```python
import torch

def _softmax(x, axis=-1):
    return torch.softmax(x, dim=axis)
def _gelu(x):
    return torch.nn.functional.gelu(x, approximate="tanh")
def _silu(x):
    return torch.nn.functional.silu(x)
def _sigmoid(x):
    return torch.sigmoid(x)
def _layernorm(x, axis=-1, eps=1e-5):
    m = x.mean(dim=axis, keepdim=True)
    v = x.var(dim=axis, keepdim=True, unbiased=False)
    return (x - m) / torch.sqrt(v + eps)
def _scatter_add(tgt, idx, src, axis=0):
    return tgt.clone().index_add_(axis, idx, src)
def _segment_sum(src, seg, n):
    out = torch.zeros((n,) + src.shape[1:], dtype=src.dtype)
    return out.index_add_(0, seg, src)
def _pad(x, pw):
    flat = tuple(v for pair in reversed(pw) for v in pair)
    return torch.nn.functional.pad(x, flat)

kernel_name = 'sequential_preLN__compressed_kv_cla__geglu_ffn__prompt'

def setup_inputs():

    _w = (lambda a: (lambda t: t.to(torch.bfloat16) if t.is_floating_point() else t)(torch.as_tensor(a)))
    def _A_setup():
        B, H, Sq, Sk, D, M = 1, 32, 2048, 2048, 128, 512
        Dc = 4 * D
        return {
            "x": _w((lambda *s: torch.randn(*s, dtype=torch.bfloat16) * 0.05)(B, Sq, M)),
            "c_kv": _w((lambda *s: torch.randn(*s, dtype=torch.bfloat16) * 0.4)(B, Sk, Dc)),
            "w_q": _w((lambda *s: torch.randn(*s, dtype=torch.bfloat16) * 1.6)(M, H, D) * (M ** -0.5)),
            "w_uk": _w((lambda *s: torch.randn(*s, dtype=torch.bfloat16) * 1.6)(Dc, H, D) * (Dc ** -0.5)),
            "w_uv": _w((lambda *s: torch.randn(*s, dtype=torch.bfloat16) * 0.4)(Dc, H, D) * (Dc ** -0.5)),
            "w_o": _w((lambda *s: torch.randn(*s, dtype=torch.bfloat16) * 0.4)(H, D, M) * ((H * D) ** -0.5)),
        }
    _A_in = _A_setup()

    def _B_setup():
        B, S, D, F = 1, 2048, 512, 1792
        return {
            "x": _w((lambda *s: torch.randn(*s, dtype=torch.bfloat16) * 0.05)(B, S, D)),
            "w_gate": _w((lambda *s: torch.randn(*s, dtype=torch.bfloat16) * 0.05)(D, F)),
            "w_up": _w((lambda *s: torch.randn(*s, dtype=torch.bfloat16) * 0.05)(D, F)),
            "w_down": _w((lambda *s: torch.randn(*s, dtype=torch.bfloat16) * 0.05)(F, D)),
        }
    _B_in = _B_setup()

    return {
        "A_x": _A_in["x"],
        "A_c_kv": _A_in["c_kv"],
        "A_w_q": _A_in["w_q"],
        "A_w_uk": _A_in["w_uk"],
        "A_w_uv": _A_in["w_uv"],
        "A_w_o": _A_in["w_o"],
        "B_x": _B_in["x"],
        "B_w_gate": _B_in["w_gate"],
        "B_w_up": _B_in["w_up"],
        "B_w_down": _B_in["w_down"],
    }

def reference(A_x, A_c_kv, A_w_q, A_w_uk, A_w_uv, A_w_o, B_x, B_w_gate, B_w_up, B_w_down):
    def _A_ref(x, c_kv, w_q, w_uk, w_uv, w_o):
        B, Sq, M = x.shape[0], x.shape[1], x.shape[2]
        Sk = c_kv.shape[1]
        H, D = w_q.shape[1], w_q.shape[2]
        q = torch.einsum("bqm,mhd->bhqd", x, w_q)
        k = torch.einsum("bkc,chd->bhkd", c_kv, w_uk)
        v = torch.einsum("bkc,chd->bhkd", c_kv, w_uv)
        scores = torch.einsum("bhqd,bhkd->bhqk", q, k) * (D ** -0.5)
        off = Sk - Sq
        qi = torch.arange(Sq)[:, None]
        kj = torch.arange(Sk)[None, :]
        cmask = kj <= (qi + off)
        scores = torch.where(cmask[None, None], scores, -1e9)
        p = _softmax(scores, axis=-1)
        ctx = torch.einsum("bhqk,bhkd->bhqd", p, v)
        return torch.einsum("bhqd,hdm->bqm", ctx, w_o)

    def _B_ref(x, w_gate, w_up, w_down):
        return (_gelu(x @ w_gate) * (x @ w_up)) @ w_down

    x = A_x
    h = x + _A_ref(_layernorm(x, axis=-1), A_c_kv, A_w_q, A_w_uk, A_w_uv, A_w_o)
    h2 = h + _B_ref(_layernorm(h, axis=-1), B_w_gate, B_w_up, B_w_down)
    return h2
```

```python
import re

TRANS = ("v_exp_f32", "v_log_f32", "v_rcp_f32", "v_rsq_f32", "v_sqrt_f32", "v_sin_f32", "v_cos_f32")


def _regs(tok):
    tok = tok.strip()
    neg = tok.lstrip("-")
    if neg.startswith("abs(") or neg.startswith("|"):
        neg = neg.replace("abs(", "").replace(")", "").replace("|", "")
    tok = neg
    m = re.fullmatch(r"([vas])\[(\d+):(\d+)\]", tok)
    if m:
        return [f"{m.group(1)}{i}" for i in range(int(m.group(2)), int(m.group(3)) + 1)]
    m = re.fullmatch(r"([vas])(\d+)", tok)
    if m:
        return [tok]
    if tok == "vcc":
        return ["vcc"]
    if tok in ("vcc_lo", "vcc_hi"):
        return ["vcc"]
    if tok == "exec":
        return ["exec"]
    if tok == "m0":
        return ["m0"]
    return []


class Ins:
    __slots__ = ("text", "op", "kind", "rd", "wr", "dpp", "tag", "srcc", "passes", "nop", "cost", "wide")

    def __init__(self, text, tag=None):
        self.text = text.strip()
        self.tag = tag
        self.dpp = False
        self.srcc = []
        self.passes = 0
        self.nop = 1
        self.wide = False
        t = self.text.split(";")[0].strip()
        if t.endswith(":") or t.startswith(".") or t == "":
            self.op = ""
            self.kind = "label"
            self.rd = []
            self.wr = []
            self.nop = 0
            return
        parts = t.split(None, 1)
        op = parts[0]
        self.op = op
        rest = parts[1] if len(parts) > 1 else ""
        ops = [o.strip() for o in rest.split(",")] if rest else []
        mods = ""
        if ops:
            last = ops[-1].split(None, 1)
            ops[-1] = last[0] if last else ""
            mods = last[1] if len(last) > 1 else ""
        R = [_regs(o) for o in ops]
        flat = lambda l: [x for y in l for x in y]
        rd, wr = [], []
        if op.startswith("v_mfma"):
            self.kind = "mfma"
            wr = R[0]
            rd = R[1] + R[2] + R[3]
            self.srcc = R[3]
            self.passes = 4 if "16x16x32" in op else 8
        elif op.startswith("ds_read") or op.startswith("ds_bpermute") or op.startswith("ds_swizzle"):
            self.kind = "dsr"
            wr = R[0]
            rd = flat(R[1:])
        elif op.startswith("ds_write") or op.startswith("ds_or") or op.startswith("ds_add"):
            self.kind = "dsw"
            rd = flat(R)
        elif op.startswith("buffer_load") and re.search(r"\blds\b", mods):
            self.kind = "dma"
            rd = flat(R) + ["m0"]
        elif op.startswith("global_load_lds"):
            self.kind = "dma"
            rd = flat(R) + ["m0"]
        elif op.startswith("buffer_load") or op.startswith("global_load"):
            self.kind = "vld"
            wr = R[0]
            rd = flat(R[1:])
        elif op.startswith("buffer_store") or op.startswith("global_store"):
            self.kind = "vst"
            rd = flat(R)
            self.wide = "x4" in op or "x3" in op
        elif op.startswith("buffer_atomic") or op.startswith("global_atomic"):
            if re.search(r"\bsc0\b", mods):
                self.kind = "vld"
                wr = R[0]
                rd = flat(R)
            else:
                self.kind = "vst"
                rd = flat(R)
        elif op.startswith("buffer_inv") or op.startswith("buffer_wbl2"):
            self.kind = "vst"
        elif op.startswith("s_load") or op.startswith("s_memtime") or op.startswith("s_memrealtime"):
            self.kind = "smem"
            wr = R[0]
            rd = flat(R[1:])
        elif op == "s_waitcnt":
            self.kind = "wait"
        elif op == "s_barrier":
            self.kind = "barrier"
        elif op == "s_nop":
            self.kind = "nop"
            self.nop = int(ops[0], 0) + 1
        elif op.startswith("s_cbranch") or op == "s_branch" or op == "s_endpgm" or op == "s_setprio" or op == "s_sleep":
            self.kind = "branch"
            if "scc" in op:
                rd = ["scc"]
            if "vcc" in op:
                rd = ["vcc"]
            if "exec" in op:
                rd = ["exec"]
        elif op.startswith("s_cmp") or op.startswith("s_bitcmp"):
            self.kind = "salu"
            rd = flat(R)
            wr = ["scc"]
        elif op.startswith("s_setpc"):
            self.kind = "branch"
            rd = flat(R)
        elif op.startswith("s_"):
            self.kind = "salu"
            wr = list(R[0])
            rd = flat(R[1:])
            if op.startswith("s_cselect") or op.startswith("s_addc") or op.startswith("s_subb"):
                rd.append("scc")
            if "saveexec" in op:
                wr.append("exec")
                rd.append("exec")
            if op.startswith("s_addk") or op.startswith("s_mulk"):
                rd += R[0]
            if not (op.startswith("s_mov") or op.startswith("s_cselect") or op.startswith("s_mul") or op.startswith("s_getpc") or op.startswith("s_getreg")):
                wr.append("scc")
        elif op.startswith("v_"):
            base = op.replace("_e32", "").replace("_e64", "").replace("_dpp", "")
            self.kind = "trans" if base in TRANS else "valu"
            if "permlane" in op and "swap" in op:
                wr = R[0] + R[1]
                rd = R[0] + R[1]
            elif base in ("v_add_co_u32", "v_sub_co_u32", "v_addc_co_u32"):
                wr = R[0] + R[1]
                rd = flat(R[2:])
            else:
                wr = R[0]
                rd = flat(R[1:])
                if base.startswith("v_fmac") or base.startswith("v_dot2c"):
                    rd = rd + R[0]
                if base.startswith("v_cndmask") and len(ops) == 3:
                    rd.append("vcc")
            if re.search(r"row_|quad_perm|wave_", mods):
                self.dpp = True
                rd = rd + R[0]
        else:
            raise ValueError("unknown instruction: " + text)
        self.rd = rd
        self.wr = wr

    def __repr__(self):
        return self.text


def I(text, tag=None):
    return Ins(text, tag)


class CheckError(Exception):
    pass


def check_trace(trace, name="", verbose=False, init_pending=None):
    errs = []
    n = len(trace)
    pos = [0] * (n + 1)
    for i, ins in enumerate(trace):
        pos[i + 1] = pos[i] + ins.nop

    def dist(j, i):
        return pos[i] - pos[j + 1]

    last_valu_w = {}
    last_trans_w = {}
    last_mfma_w = {}
    last_mfma_c = {}
    last_salu_w = {}
    last_store_r = {}
    lg = []
    vm = []

    def err(i, msg):
        errs.append(f"[{name}] @{i} `{trace[i].text}`: {msg}")

    for i, ins in enumerate(trace):
        k = ins.kind
        if k == "label":
            if ins.text.startswith("; REQUIRE_LANDED"):
                tg = ins.text.split()[2]
                for (j, regs, t) in vm:
                    if t == tg:
                        err(i, f"vm op {j} `{trace[j].text}` tag {tg} still outstanding")
            if ins.text.startswith("; REQUIRE_LGKM0"):
                if lg:
                    err(i, "lgkm ops outstanding")
            continue
        if k == "wait":
            m = re.search(r"vmcnt\((\d+)\)", ins.text)
            if m:
                c = int(m.group(1))
                if c > 63:
                    err(i, "vmcnt > 63")
                while len(vm) > c:
                    vm.pop(0)
            m = re.search(r"lgkmcnt\((\d+)\)", ins.text)
            if m:
                c = int(m.group(1))
                if c > 15:
                    err(i, "lgkmcnt > 15")
                if c == 0:
                    lg.clear()
                else:
                    if any(s for (_, _, s) in lg):
                        pass
                    else:
                        while len(lg) > c:
                            lg.pop(0)
            continue
        touched = set(ins.rd) | set(ins.wr)
        for (j, regs, s) in lg:
            if touched & set(regs):
                err(i, f"touches pending lgkm dest of {j} `{trace[j].text}`")
        for (j, regs, t) in vm:
            if touched & set(regs):
                err(i, f"touches pending vm dest of {j} `{trace[j].text}`")
        isv = k in ("valu", "trans")
        for r in ins.rd:
            if k == "mfma":
                if r in last_valu_w and dist(last_valu_w[r], i) < 2:
                    err(i, f"VALU write {r} -> MFMA read <2")
                if r in last_mfma_w:
                    j = last_mfma_w[r]
                    p = trace[j]
                    d = dist(j, i)
                    ab = [x for x in ins.rd[: len(ins.rd) - len(ins.srcc)]]
                    if r in ab:
                        need = 8 if p.passes == 4 else 12
                        if d < need:
                            err(i, f"MFMA D {r} -> MFMA A/B read {d}<{need}")
                    elif r in ins.srcc:
                        if ins.srcc == p.wr and ins.passes == p.passes:
                            pass
                        else:
                            need = 6 if p.passes == 4 else 10
                            if d < need:
                                err(i, f"MFMA D {r} -> MFMA SrcC overlap {d}<{need}")
            else:
                if r in last_mfma_w:
                    j = last_mfma_w[r]
                    need = 8 if trace[j].passes == 4 else 12
                    if dist(j, i) < need:
                        err(i, f"MFMA D {r} -> read {dist(j,i)}<{need}")
            if r in last_trans_w and k != "trans" and dist(last_trans_w[r], i) < 1:
                err(i, f"trans result {r} used <1")
            if r in last_valu_w:
                d = dist(last_valu_w[r], i)
                if r[0] in "va" and r != "vcc":
                    if ins.dpp and d < 2:
                        err(i, f"VALU write {r} -> DPP read <2")
                    if "permlane" in ins.op and d < 2:
                        err(i, f"VALU write {r} -> permlane <2")
                    if ("readfirstlane" in ins.op or "readlane" in ins.op) and d < 1:
                        err(i, f"VALU write {r} -> readlane <1")
                else:
                    if isv and d < 2:
                        err(i, f"VALU write {r} -> VALU const read <2")
                    if k in ("vld", "vst", "dma") and d < 5:
                        err(i, f"VALU write {r} -> VMEM read <5")
                    if k in ("salu", "branch") and d < 1:
                        pass
            if r == "m0" and k == "dma" and "m0" in last_salu_w and dist(last_salu_w["m0"], i) < 1:
                err(i, "SALU m0 write -> DMA <1")
        for r in ins.wr:
            if k != "mfma" and r in last_mfma_w:
                j = last_mfma_w[r]
                need = 8 if trace[j].passes == 4 else 12
                if dist(j, i) < need:
                    err(i, f"MFMA D {r} -> overwrite {dist(j,i)}<{need}")
            if k == "mfma" and r in last_mfma_w:
                j = last_mfma_w[r]
                if not (ins.srcc == trace[j].wr):
                    need = 6 if trace[j].passes == 4 else 10
                    if dist(j, i) < need:
                        err(i, f"MFMA D {r} WAW unchained {dist(j,i)}<{need} (conservative)")
            if isv and r in last_mfma_c:
                j = last_mfma_c[r]
                need = 3 if trace[j].passes == 4 else 7
                if dist(j, i) < need:
                    err(i, f"MFMA SrcC {r} -> VALU overwrite <{need}")
            if r in last_store_r:
                d = dist(last_store_r[r], i)
                need = 2 if isv else 1
                if d < need:
                    err(i, f"wide store data {r} overwritten <{need}")
        for r in ins.wr:
            last_valu_w.pop(r, None)
            last_trans_w.pop(r, None)
            last_mfma_w.pop(r, None)
            last_salu_w.pop(r, None)
            if isv:
                last_valu_w[r] = i
                if k == "trans":
                    last_trans_w[r] = i
            elif k == "mfma":
                last_mfma_w[r] = i
            elif k == "salu":
                last_salu_w[r] = i
        if k == "mfma":
            for r in ins.srcc:
                last_mfma_c[r] = i
        if k == "vst" and ins.wide:
            for r in ins.rd[:4]:
                last_store_r[r] = i
        if k in ("dsr", "dsw"):
            lg.append((i, ins.wr, False))
            if len(lg) > 15 + 48:
                pass
        elif k == "smem":
            lg.append((i, ins.wr, True))
        elif k in ("vld", "vst", "dma"):
            vm.append((i, ins.wr, ins.tag))
            if len(vm) > 63:
                err(i, "more than 63 vm ops outstanding (counter saturates -> stalls)")
    return errs


class Filler:
    __slots__ = ("ins", "lo", "hi", "prio", "sep")

    def __init__(self, ins, lo=0, hi=10**9, prio=0, sep=0):
        self.sep = sep
        self.ins = ins if isinstance(ins, Ins) else Ins(ins)
        self.lo = lo
        self.hi = hi
        self.prio = prio


def cost(ins):
    k = ins.kind
    if k == "trans":
        return 8
    if k == "valu":
        return 4
    if k in ("dsr", "dsw"):
        return 4
    if k in ("dma", "vld", "vst"):
        return 8
    return 0


def weave(mfmas, streams, budget=8, report=None):
    out = []
    for st in streams:
        for i in range(len(st) - 2, -1, -1):
            st[i].hi = min(st[i].hi, st[i + 1].hi)
            st[i].lo = min(st[i].lo, st[i].hi)
    ptr = [0] * len(streams)
    lastg = [-100] * len(streams)
    ng = len(mfmas)
    over = 0
    for g in range(ng):
        out.append(mfmas[g])
        left = budget
        head = []
        tail = []
        in_tail = set()
        used_first = False
        while True:
            cands = []
            for s, st in enumerate(streams):
                if ptr[s] < len(st) and st[ptr[s]].lo <= g and lastg[s] + st[ptr[s]].sep <= g:
                    f = st[ptr[s]]
                    cands.append((f.hi, -f.prio, s, f))
            if not cands:
                break
            cands.sort(key=lambda x: (x[0], x[1], x[2]))
            placed = False
            for (_, _, s, f) in cands:
                k = f.ins.kind
                c = cost(f.ins)
                forced = f.hi <= g
                if k == "label":
                    (tail if s in in_tail else head).append(f.ins)
                    placed = True
                elif k in ("valu", "trans"):
                    if c <= left or forced:
                        tail.append(f.ins)
                        in_tail.add(s)
                        left -= c
                        placed = True
                else:
                    if not used_first and s not in in_tail and c <= left:
                        head.append(f.ins)
                        used_first = True
                        left -= c
                        placed = True
                    elif forced:
                        if s in in_tail:
                            tail.append(f.ins)
                            left -= c + (8 if c else 4)
                        else:
                            head.append(f.ins)
                            left -= c + (0 if c else 4)
                        used_first = True
                        placed = True
                if placed:
                    ptr[s] += 1
                    lastg[s] = g
                    break
            if not placed:
                break
        if left < 0:
            over += -left
        out += head + tail
    nleft = 0
    while True:
        cands = [(streams[s][ptr[s]].lo, s) for s in range(len(streams)) if ptr[s] < len(streams[s])]
        if not cands:
            break
        cands.sort()
        s = cands[0][1]
        f = streams[s][ptr[s]]
        if f.sep >= 2:
            out.append(Ins("s_nop 1"))
        out.append(f.ins)
        ptr[s] += 1
        nleft += 1
    if report:
        print(f"weave {report}: {ng} mfma, over-budget {over} cyc, left-over {nleft}")
    return out, over


class Prog:
    def __init__(self):
        self.blocks = {}
        self.order = []

    def block(self, name, ins):
        l = []
        if isinstance(ins, str):
            ins = [ins]
        for x in ins:
            if isinstance(x, str):
                for ln in x.strip("\n").split("\n"):
                    if ln.strip():
                        l.append(Ins(ln))
            else:
                l.append(x)
        self.blocks[name] = l
        self.order.append(name)
        return l

    def text(self):
        o = []
        for n in self.order:
            for ins in self.blocks[n]:
                t = ins.text
                o.append(t if (t.endswith(":") or t.startswith(".")) else "    " + t)
        return "\n".join(o) + "\n"

    def check(self, names, label=""):
        tr = []
        for n in names:
            tr += self.blocks[n]
        errs = check_trace(tr, label or ",".join(names))
        return errs


def L(text):
    return [Ins(ln) for ln in text.strip("\n").split("\n") if ln.strip()]


def dataflow(seq):
    last = {}
    reads = {}
    for ins in seq:
        if ins.kind in ("label", "wait", "nop", "barrier"):
            continue
        reads[id(ins)] = tuple(last.get(r) for r in ins.rd)
        for r in ins.wr:
            last[r] = id(ins)
    return reads, last


def check_equiv(ref, woven, name=""):
    ra, la = dataflow(ref)
    rb, lb = dataflow(woven)
    errs = []
    if set(ra) != set(rb):
        errs.append(f"[{name}] instruction sets differ: {len(ra)} vs {len(rb)}")
        return errs
    byid = {id(i): i for i in ref}
    for k in ra:
        if ra[k] != rb[k]:
            errs.append(f"[{name}] dataflow differs at `{byid[k].text}`")
    for r in la:
        if la[r] != lb.get(r):
            errs.append(f"[{name}] final writer of {r} differs")
    return errs


def resolve_waits(seq):
    tags = []
    for ins in seq:
        if ins.kind in ("vld", "vst", "dma"):
            tags.append(ins.tag)
        elif ins.kind == "wait" and "@" in ins.text:
            m = re.search(r"vmcnt\(([^)]*)\)", ins.text)
            want = [t.strip()[1:] for t in m.group(1).split("|")]
            idx = [i for i, t in enumerate(tags) if t in want]
            n = len(tags) - 1 - max(idx) if idx else 63
            ins.text = ins.text.replace(m.group(0), f"vmcnt({min(n, 63)})")
    return seq
```

```python
from asmlib import *

XN_OFF   = 0x0000000
H_OFF    = 0x0200000
ST_OFF   = 0x0400000
CS_OFF   = 0x0420000
WGU_OFF  = 0x0500000
ACT_OFF  = 0x0900000
CTX_OFF  = 0x1000000
KV_OFF   = 0x2000000
XN_SZ, H_SZ, ST_SZ, CS_SZ = 0x200000, 0x200000, 0x20000, 112*128
WGU_SZ, ACT_SZ, CTX_SZ, KV_SZ = 112*32768, 32*56*4096, 0x1000000, 0x2000000

A_X, A_CKV, A_WQ, A_WUK, A_WUV, A_WO, A_BX, A_WG, A_WU, A_WD, A_OUT, A_DBG, A_WS = [8*i for i in range(13)]

QSCALE = 1.4426950408889634 / (128 ** 0.5)

import struct
def f32(x):
    return "0x%08x" % struct.unpack("<I", struct.pack("<f", x))[0]

def srd_from(dst, ptr, size, off=0):
    o = []
    if off:
        o.append(f"s_add_u32 s{dst}, s{ptr}, {hex(off)}")
        o.append(f"s_addc_u32 s{dst+1}, s{ptr+1}, 0")
    else:
        o.append(f"s_mov_b32 s{dst}, s{ptr}")
        o.append(f"s_mov_b32 s{dst+1}, s{ptr+1}")
    o.append(f"s_mov_b32 s{dst+2}, {hex(size)}")
    o.append(f"s_mov_b32 s{dst+3}, 0x00020000")
    return "\n".join(o) + "\n"

def vr(b, n=4): return f"v[{b}:{b+n-1}]"
def ar(b, n=4): return f"a[{b}:{b+n-1}]"

def mfma(d, a, b, c):
    return Ins(f"v_mfma_f32_16x16x32_bf16 {d}, {a}, {b}, {c}")

def kdesc(name, vgpr=512, accum=256, sgpr=100):
    return f""".amdhsa_kernel {name}
  .amdhsa_next_free_vgpr {vgpr}
  .amdhsa_next_free_sgpr {sgpr}
  .amdhsa_accum_offset {accum}
  .amdhsa_group_segment_fixed_size 0
  .amdhsa_kernarg_size 104
  .amdhsa_user_sgpr_count 2
  .amdhsa_user_sgpr_kernarg_segment_ptr 1
  .amdhsa_system_sgpr_workgroup_id_x 1
.end_amdhsa_kernel
"""

def khead(name):
    return f""".globl {name}
.p2align 8
.type {name},@function
{name}:
"""

def xsum4(x, t):
    return [f"v_mov_b32 v{t}, v{x}", "s_nop 1", f"v_permlane32_swap_b32 v{x}, v{t}", f"v_add_f32 v{x}, v{x}, v{t}",
            f"v_mov_b32 v{t}, v{x}", "s_nop 1", f"v_permlane16_swap_b32 v{x}, v{t}", f"v_add_f32 v{x}, v{x}, v{t}"]

def code_prefetch(name, end_label, vtmp, stmp, nlines):
    o = [f"s_getpc_b64 s[{stmp}:{stmp+1}]",
         f"v_and_b32 v{vtmp}, 63, v0", f"v_lshlrev_b32 v{vtmp}, 7, v{vtmp}"]
    return o

import os
STAMPS = os.environ.get("STAMPS", "0") == "1"
STAMP_OFF = 0x8000000
def stamp(i):
    if not STAMPS: return []
    return [Ins(f"s_memtime s[{80+2*i}:{81+2*i}]")]
def stamp_rt(i):
    if not STAMPS: return []
    return [Ins(f"s_memrealtime s[{80+2*i}:{81+2*i}]")]
def stamp_dump(kidx, n, sw, wsptr, vt=4):
    if not STAMPS: return []
    o = ["s_waitcnt lgkmcnt(0)",
         f"s_add_u32 s4, s{wsptr}, {hex(STAMP_OFF + kidx*0x10000)}", f"s_addc_u32 s5, s{wsptr+1}, 0", "s_mov_b32 s6, 0x10000", "s_mov_b32 s7, 0x00020000",
         f"s_lshl_b32 s8, s2, 2", f"s_add_u32 s8, s8, s{sw}", "s_lshl_b32 s8, s8, 6", f"v_mov_b32 v{vt}, s8"]
    for i in range(n):
        o += [f"v_mov_b32 v{vt+1}, s{80+2*i}", f"buffer_store_dword v{vt+1}, v{vt}, s[4:7], 0 offen offset:{4*i}", "s_nop 1"]
    o.append("s_waitcnt vmcnt(0)")
    return [Ins(x) for x in o]
```

```python
import sys, os
sys.path.insert(0, os.path.dirname(__file__))
from common import *
import importlib

HEADER = open(os.path.join(os.path.dirname(__file__), "..", "cdna_kernels",
    "sequential_preLN__compressed_kv_cla__geglu_ffn__prompt.s.ref")).read().split("; Override launch")[0]

def build(gens, out):
    texts, descs, launches, allerrs = [], [], [], []
    for g in gens:
        t, d, l, errs = g
        texts.append(t); descs.append(d); launches.append(l); allerrs += errs
    s = HEADER + "\n".join(launches) + "\n"
    s += '.amdgcn_target "amdgcn-amd-amdhsa--gfx950"\n.text\n'
    s += "".join(texts)
    s += "L_text_end:\n"
    s += '.section .rodata,"a"\n'
    for d in descs:
        s += ".p2align 6\n" + d
    open(out, "w").write(s)
    if allerrs:
        print("\n".join(allerrs[:60]))
        print("HAZARD/WAIT ERRORS:", len(allerrs))
    print("wrote", out, len(s), "bytes")
    return allerrs

if __name__ == "__main__":
    out = sys.argv[1]
    mods = sys.argv[2:]
    gens = []
    for m in mods:
        mod, _, fn = m.partition(":")
        M = importlib.import_module(mod)
        gens.append(getattr(M, fn or "gen")())
    e = build(gens, out)
    sys.exit(1 if e else 0)
```

```python
import re

TRANS = ("v_exp_f32", "v_log_f32", "v_rcp_f32", "v_rsq_f32", "v_sqrt_f32", "v_sin_f32", "v_cos_f32")


def _regs(tok):
    tok = tok.strip()
    neg = tok.lstrip("-")
    if neg.startswith("abs(") or neg.startswith("|"):
        neg = neg.replace("abs(", "").replace(")", "").replace("|", "")
    tok = neg
    m = re.fullmatch(r"([vas])\[(\d+):(\d+)\]", tok)
    if m:
        return [f"{m.group(1)}{i}" for i in range(int(m.group(2)), int(m.group(3)) + 1)]
    m = re.fullmatch(r"([vas])(\d+)", tok)
    if m:
        return [tok]
    if tok == "vcc":
        return ["vcc"]
    if tok in ("vcc_lo", "vcc_hi"):
        return ["vcc"]
    if tok == "exec":
        return ["exec"]
    if tok == "m0":
        return ["m0"]
    return []


class Ins:
    __slots__ = ("text", "op", "kind", "rd", "wr", "dpp", "tag", "srcc", "passes", "nop", "cost", "wide")

    def __init__(self, text, tag=None):
        self.text = text.strip()
        self.tag = tag
        self.dpp = False
        self.srcc = []
        self.passes = 0
        self.nop = 1
        self.wide = False
        t = self.text.split(";")[0].strip()
        if t.endswith(":") or t.startswith(".") or t == "":
            self.op = ""
            self.kind = "label"
            self.rd = []
            self.wr = []
            self.nop = 0
            return
        parts = t.split(None, 1)
        op = parts[0]
        self.op = op
        rest = parts[1] if len(parts) > 1 else ""
        ops = [o.strip() for o in rest.split(",")] if rest else []
        mods = ""
        if ops:
            last = ops[-1].split(None, 1)
            ops[-1] = last[0] if last else ""
            mods = last[1] if len(last) > 1 else ""
        R = [_regs(o) for o in ops]
        flat = lambda l: [x for y in l for x in y]
        rd, wr = [], []
        if op.startswith("v_mfma"):
            self.kind = "mfma"
            wr = R[0]
            rd = R[1] + R[2] + R[3]
            self.srcc = R[3]
            self.passes = 4 if "16x16x32" in op else 8
        elif op.startswith("ds_read") or op.startswith("ds_bpermute") or op.startswith("ds_swizzle"):
            self.kind = "dsr"
            wr = R[0]
            rd = flat(R[1:])
        elif op.startswith("ds_write") or op.startswith("ds_or") or op.startswith("ds_add"):
            self.kind = "dsw"
            rd = flat(R)
        elif op.startswith("buffer_load") and re.search(r"\blds\b", mods):
            self.kind = "dma"
            rd = flat(R) + ["m0"]
        elif op.startswith("global_load_lds"):
            self.kind = "dma"
            rd = flat(R) + ["m0"]
        elif op.startswith("buffer_load") or op.startswith("global_load"):
            self.kind = "vld"
            wr = R[0]
            rd = flat(R[1:])
        elif op.startswith("buffer_store") or op.startswith("global_store"):
            self.kind = "vst"
            rd = flat(R)
            self.wide = "x4" in op or "x3" in op
        elif op.startswith("buffer_atomic") or op.startswith("global_atomic"):
            if re.search(r"\bsc0\b", mods):
                self.kind = "vld"
                wr = R[0]
                rd = flat(R)
            else:
                self.kind = "vst"
                rd = flat(R)
        elif op.startswith("buffer_inv") or op.startswith("buffer_wbl2"):
            self.kind = "vst"
        elif op.startswith("s_load") or op.startswith("s_memtime") or op.startswith("s_memrealtime"):
            self.kind = "smem"
            wr = R[0]
            rd = flat(R[1:])
        elif op == "s_waitcnt":
            self.kind = "wait"
        elif op == "s_barrier":
            self.kind = "barrier"
        elif op == "s_nop":
            self.kind = "nop"
            self.nop = int(ops[0], 0) + 1
        elif op.startswith("s_cbranch") or op == "s_branch" or op == "s_endpgm" or op == "s_setprio" or op == "s_sleep":
            self.kind = "branch"
            if "scc" in op:
                rd = ["scc"]
            if "vcc" in op:
                rd = ["vcc"]
            if "exec" in op:
                rd = ["exec"]
        elif op.startswith("s_cmp") or op.startswith("s_bitcmp"):
            self.kind = "salu"
            rd = flat(R)
            wr = ["scc"]
        elif op.startswith("s_setpc"):
            self.kind = "branch"
            rd = flat(R)
        elif op.startswith("s_"):
            self.kind = "salu"
            wr = list(R[0])
            rd = flat(R[1:])
            if op.startswith("s_cselect") or op.startswith("s_addc") or op.startswith("s_subb"):
                rd.append("scc")
            if "saveexec" in op:
                wr.append("exec")
                rd.append("exec")
            if op.startswith("s_addk") or op.startswith("s_mulk"):
                rd += R[0]
            if not (op.startswith("s_mov") or op.startswith("s_cselect") or op.startswith("s_mul") or op.startswith("s_getpc") or op.startswith("s_getreg")):
                wr.append("scc")
        elif op.startswith("v_"):
            base = op.replace("_e32", "").replace("_e64", "").replace("_dpp", "")
            self.kind = "trans" if base in TRANS else "valu"
            if "permlane" in op and "swap" in op:
                wr = R[0] + R[1]
                rd = R[0] + R[1]
            elif base in ("v_add_co_u32", "v_sub_co_u32", "v_addc_co_u32"):
                wr = R[0] + R[1]
                rd = flat(R[2:])
            else:
                wr = R[0]
                rd = flat(R[1:])
                if base.startswith("v_fmac") or base.startswith("v_dot2c"):
                    rd = rd + R[0]
                if base.startswith("v_cndmask") and len(ops) == 3:
                    rd.append("vcc")
            if re.search(r"row_|quad_perm|wave_", mods):
                self.dpp = True
                rd = rd + R[0]
        else:
            raise ValueError("unknown instruction: " + text)
        self.rd = rd
        self.wr = wr

    def __repr__(self):
        return self.text


def I(text, tag=None):
    return Ins(text, tag)


class CheckError(Exception):
    pass


def check_trace(trace, name="", verbose=False, init_pending=None):
    errs = []
    n = len(trace)
    pos = [0] * (n + 1)
    for i, ins in enumerate(trace):
        pos[i + 1] = pos[i] + ins.nop

    def dist(j, i):
        return pos[i] - pos[j + 1]

    last_valu_w = {}
    last_trans_w = {}
    last_mfma_w = {}
    last_mfma_c = {}
    last_salu_w = {}
    last_store_r = {}
    lg = []
    vm = []

    def err(i, msg):
        errs.append(f"[{name}] @{i} `{trace[i].text}`: {msg}")

    for i, ins in enumerate(trace):
        k = ins.kind
        if k == "label":
            if ins.text.startswith("; REQUIRE_LANDED"):
                tg = ins.text.split()[2]
                for (j, regs, t) in vm:
                    if t == tg:
                        err(i, f"vm op {j} `{trace[j].text}` tag {tg} still outstanding")
            if ins.text.startswith("; REQUIRE_LGKM0"):
                if lg:
                    err(i, "lgkm ops outstanding")
            continue
        if k == "wait":
            m = re.search(r"vmcnt\((\d+)\)", ins.text)
            if m:
                c = int(m.group(1))
                if c > 63:
                    err(i, "vmcnt > 63")
                while len(vm) > c:
                    vm.pop(0)
            m = re.search(r"lgkmcnt\((\d+)\)", ins.text)
            if m:
                c = int(m.group(1))
                if c > 15:
                    err(i, "lgkmcnt > 15")
                if c == 0:
                    lg.clear()
                else:
                    if any(s for (_, _, s) in lg):
                        pass
                    else:
                        while len(lg) > c:
                            lg.pop(0)
            continue
        touched = set(ins.rd) | set(ins.wr)
        for (j, regs, s) in lg:
            if touched & set(regs):
                err(i, f"touches pending lgkm dest of {j} `{trace[j].text}`")
        for (j, regs, t) in vm:
            if touched & set(regs) and not (k == "vld" and set(regs) <= set(ins.wr) and not set(ins.rd) & set(regs)):
                err(i, f"touches pending vm dest of {j} `{trace[j].text}`")
        isv = k in ("valu", "trans")
        for r in ins.rd:
            if k == "mfma":
                if r in last_valu_w and dist(last_valu_w[r], i) < 2:
                    err(i, f"VALU write {r} -> MFMA read <2")
                if r in last_mfma_w:
                    j = last_mfma_w[r]
                    p = trace[j]
                    d = dist(j, i)
                    ab = [x for x in ins.rd[: len(ins.rd) - len(ins.srcc)]]
                    if r in ab:
                        need = 8 if p.passes == 4 else 12
                        if d < need:
                            err(i, f"MFMA D {r} -> MFMA A/B read {d}<{need}")
                    elif r in ins.srcc:
                        if ins.srcc == p.wr and ins.passes == p.passes:
                            pass
                        else:
                            need = 6 if p.passes == 4 else 10
                            if d < need:
                                err(i, f"MFMA D {r} -> MFMA SrcC overlap {d}<{need}")
            else:
                if r in last_mfma_w:
                    j = last_mfma_w[r]
                    need = 8 if trace[j].passes == 4 else 12
                    if dist(j, i) < need:
                        err(i, f"MFMA D {r} -> read {dist(j,i)}<{need}")
            if r in last_trans_w and k != "trans" and dist(last_trans_w[r], i) < 1:
                err(i, f"trans result {r} used <1")
            if r in last_valu_w:
                d = dist(last_valu_w[r], i)
                if r[0] in "va" and r != "vcc":
                    if ins.dpp and d < 2:
                        err(i, f"VALU write {r} -> DPP read <2")
                    if "permlane" in ins.op and d < 2:
                        err(i, f"VALU write {r} -> permlane <2")
                    if ("readfirstlane" in ins.op or "readlane" in ins.op) and d < 1:
                        err(i, f"VALU write {r} -> readlane <1")
                else:
                    if isv and d < 2:
                        err(i, f"VALU write {r} -> VALU const read <2")
                    if k in ("vld", "vst", "dma") and d < 5:
                        err(i, f"VALU write {r} -> VMEM read <5")
                    if k in ("salu", "branch") and d < 1:
                        pass
            if r == "m0" and k == "dma" and "m0" in last_salu_w and dist(last_salu_w["m0"], i) < 1:
                err(i, "SALU m0 write -> DMA <1")
        for r in ins.wr:
            if k != "mfma" and r in last_mfma_w:
                j = last_mfma_w[r]
                need = 8 if trace[j].passes == 4 else 12
                if dist(j, i) < need:
                    err(i, f"MFMA D {r} -> overwrite {dist(j,i)}<{need}")
            if k == "mfma" and r in last_mfma_w:
                j = last_mfma_w[r]
                if not (ins.srcc == trace[j].wr):
                    need = 6 if trace[j].passes == 4 else 10
                    if dist(j, i) < need:
                        err(i, f"MFMA D {r} WAW unchained {dist(j,i)}<{need} (conservative)")
            if isv and r in last_mfma_c:
                j = last_mfma_c[r]
                need = 3 if trace[j].passes == 4 else 7
                if dist(j, i) < need:
                    err(i, f"MFMA SrcC {r} -> VALU overwrite <{need}")
            if r in last_store_r:
                d = dist(last_store_r[r], i)
                need = 2 if isv else 1
                if d < need:
                    err(i, f"wide store data {r} overwritten <{need}")
        for r in ins.wr:
            last_valu_w.pop(r, None)
            last_trans_w.pop(r, None)
            last_mfma_w.pop(r, None)
            last_salu_w.pop(r, None)
            if isv:
                last_valu_w[r] = i
                if k == "trans":
                    last_trans_w[r] = i
            elif k == "mfma":
                last_mfma_w[r] = i
            elif k == "salu":
                last_salu_w[r] = i
        if k == "mfma":
            for r in ins.srcc:
                last_mfma_c[r] = i
        if k == "vst" and ins.wide:
            for r in ins.rd[:4]:
                last_store_r[r] = i
        if k in ("dsr", "dsw"):
            lg.append((i, ins.wr, False))
            if len(lg) > 15 + 48:
                pass
        elif k == "smem":
            lg.append((i, ins.wr, True))
        elif k in ("vld", "vst", "dma"):
            vm.append((i, ins.wr, ins.tag))
            if len(vm) > 63:
                err(i, "more than 63 vm ops outstanding (counter saturates -> stalls)")
    return errs


class Bundle:
    def __init__(self, l):
        self.l = l
        self.kind = "bundle"


class Filler:
    __slots__ = ("ins", "lo", "hi", "prio", "sep")

    def __init__(self, ins, lo=0, hi=10**9, prio=0, sep=0):
        self.sep = sep
        if isinstance(ins, (list, tuple)):
            self.ins = Bundle([x if isinstance(x, Ins) else Ins(x) for x in ins])
        else:
            self.ins = ins if isinstance(ins, Ins) else Ins(ins)
        self.lo = lo
        self.hi = hi
        self.prio = prio


def cost(ins):
    k = ins.kind
    if k == "bundle":
        return 4 * (len(ins.l) - 1)
    if k == "trans":
        return 8
    if k == "valu":
        return 4
    if k in ("dsr", "dsw"):
        return 4
    if k in ("dma", "vld", "vst"):
        return 8
    return 0


def weave(mfmas, streams, budget=8, report=None):
    out = []
    for st in streams:
        for i in range(len(st) - 2, -1, -1):
            st[i].hi = min(st[i].hi, st[i + 1].hi)
            st[i].lo = min(st[i].lo, st[i].hi)
    ptr = [0] * len(streams)
    lastg = [-100] * len(streams)
    ng = len(mfmas)
    over = 0
    for g in range(ng):
        out.append(mfmas[g])
        left = budget
        head = []
        tail = []
        in_tail = set()
        used_first = False
        while True:
            cands = []
            for s, st in enumerate(streams):
                if ptr[s] < len(st) and st[ptr[s]].lo <= g and lastg[s] + st[ptr[s]].sep <= g:
                    f = st[ptr[s]]
                    cands.append((f.hi, -f.prio, s, f))
            if not cands:
                break
            cands.sort(key=lambda x: (x[0], x[1], x[2]))
            placed = False
            for (_, _, s, f) in cands:
                k = f.ins.kind
                c = cost(f.ins)
                forced = f.hi <= g
                if k == "label":
                    (tail if s in in_tail else head).append(f.ins)
                    placed = True
                elif k in ("valu", "trans"):
                    if c <= left or forced:
                        tail.append(f.ins)
                        in_tail.add(s)
                        left -= c
                        placed = True
                else:
                    if not used_first and s not in in_tail and (c <= left or (k == 'bundle' and left == budget)):
                        head.append(f.ins)
                        used_first = True
                        left -= c
                        placed = True
                    elif forced:
                        if s in in_tail:
                            tail.append(f.ins)
                            left -= c + (8 if c else 4)
                        else:
                            head.append(f.ins)
                            left -= c + (0 if c else 4)
                        used_first = True
                        placed = True
                if placed:
                    ptr[s] += 1
                    lastg[s] = g
                    break
            if not placed:
                break
        if left < 0:
            over += -left
        for x in head + tail:
            out += x.l if x.kind == "bundle" else [x]
    nleft = 0
    while True:
        cands = [(streams[s][ptr[s]].lo, s) for s in range(len(streams)) if ptr[s] < len(streams[s])]
        if not cands:
            break
        cands.sort()
        s = cands[0][1]
        f = streams[s][ptr[s]]
        if f.sep >= 2:
            out.append(Ins("s_nop 1"))
        out += f.ins.l if f.ins.kind == "bundle" else [f.ins]
        ptr[s] += 1
        nleft += 1
    if report:
        print(f"weave {report}: {ng} mfma, over-budget {over} cyc, left-over {nleft}")
    return out, over


class Prog:
    def __init__(self):
        self.blocks = {}
        self.order = []

    def block(self, name, ins):
        l = []
        if isinstance(ins, str):
            ins = [ins]
        for x in ins:
            if isinstance(x, str):
                for ln in x.strip("\n").split("\n"):
                    if ln.strip():
                        l.append(Ins(ln))
            else:
                l.append(x)
        self.blocks[name] = l
        self.order.append(name)
        return l

    def text(self):
        o = []
        for n in self.order:
            for ins in self.blocks[n]:
                t = ins.text
                o.append(t if (t.endswith(":") or t.startswith(".")) else "    " + t)
        return "\n".join(o) + "\n"

    def check(self, names, label=""):
        tr = []
        for n in names:
            tr += self.blocks[n]
        errs = check_trace(tr, label or ",".join(names))
        return errs


def L(text):
    return [Ins(ln) for ln in text.strip("\n").split("\n") if ln.strip()]


def dataflow(seq):
    last = {}
    reads = {}
    for ins in seq:
        if ins.kind in ("label", "wait", "nop", "barrier"):
            continue
        reads[id(ins)] = tuple(last.get(r) for r in ins.rd)
        for r in ins.wr:
            last[r] = id(ins)
    return reads, last


def check_equiv(ref, woven, name=""):
    ra, la = dataflow(ref)
    rb, lb = dataflow(woven)
    errs = []
    if set(ra) != set(rb):
        errs.append(f"[{name}] instruction sets differ: {len(ra)} vs {len(rb)}")
        return errs
    byid = {id(i): i for i in ref}
    for k in ra:
        if ra[k] != rb[k]:
            errs.append(f"[{name}] dataflow differs at `{byid[k].text}`")
    for r in la:
        if r != "scc" and la[r] != lb.get(r):
            errs.append(f"[{name}] final writer of {r} differs")
    return errs


def resolve_waits(seq):
    tags = []
    for ins in seq:
        if ins.kind in ("vld", "vst", "dma"):
            tags.append(ins.tag)
        elif ins.kind == "wait" and "@" in ins.text:
            m = re.search(r"vmcnt\(([^)]*)\)", ins.text)
            want = [t.strip()[1:] for t in m.group(1).split("|")]
            idx = [i for i, t in enumerate(tags) if t in want]
            n = len(tags) - 1 - max(idx) if idx else 63
            ins.text = ins.text.replace(m.group(0), f"vmcnt({min(n, 63)})")
    return seq


def bundles(seq):
    out = []
    i = 0
    seq = [x if isinstance(x, Ins) else Ins(x) for x in seq]
    while i < len(seq):
        x = seq[i]
        j = i + 1
        if "scc" in x.wr:
            while j < len(seq) and "scc" in seq[j].rd:
                j += 1
        out.append(seq[i:j] if j - i > 1 else x)
        i = j
    return out
```

```python
from asmlib import *

XN_OFF   = 0x0000000
H_OFF    = 0x0200000
ST_OFF   = 0x0400000
CS_OFF   = 0x0420000
WGU_OFF  = 0x0500000
ACT_OFF  = 0x0900000
CTX_OFF  = 0x1000000
KV_OFF   = 0x2000000
XN_SZ, H_SZ, ST_SZ, CS_SZ = 0x200000, 0x200000, 0x20000, 112*128
WGU_SZ, ACT_SZ, CTX_SZ, KV_SZ = 112*32768, 32*56*4096, 0x1000000, 0x2000000

FL_OFF, FL_SZ = 0x0480000, 0x4000
FL_XN, FL_KV, FL_XC, FL_CTX, FL_H, FL_ACT = 0, 1024, 2048, 4096, 8192, 9216
WO_OFF, WO_SZ = 0x4000000, 8*128*4096
WD_OFF, WD_SZ = 0x4400000, 8*56*4096
A_X, A_CKV, A_WQ, A_WUK, A_WUV, A_WO, A_BX, A_WG, A_WU, A_WD, A_OUT, A_DBG, A_WS = [8*i for i in range(13)]

QSCALE = 1.4426950408889634 / (128 ** 0.5)

import struct
def f32(x):
    return "0x%08x" % struct.unpack("<I", struct.pack("<f", x))[0]

def srd_from(dst, ptr, size, off=0):
    o = []
    if off:
        o.append(f"s_add_u32 s{dst}, s{ptr}, {hex(off)}")
        o.append(f"s_addc_u32 s{dst+1}, s{ptr+1}, 0")
    else:
        o.append(f"s_mov_b32 s{dst}, s{ptr}")
        o.append(f"s_mov_b32 s{dst+1}, s{ptr+1}")
    o.append(f"s_mov_b32 s{dst+2}, {hex(size)}")
    o.append(f"s_mov_b32 s{dst+3}, 0x00020000")
    return "\n".join(o) + "\n"

def vr(b, n=4): return f"v[{b}:{b+n-1}]"
def ar(b, n=4): return f"a[{b}:{b+n-1}]"

def mfma(d, a, b, c):
    return Ins(f"v_mfma_f32_16x16x32_bf16 {d}, {a}, {b}, {c}")

def kdesc(name, vgpr=512, accum=256, sgpr=102):
    return f""".amdhsa_kernel {name}
  .amdhsa_next_free_vgpr {vgpr}
  .amdhsa_next_free_sgpr {sgpr}
  .amdhsa_accum_offset {accum}
  .amdhsa_group_segment_fixed_size 0
  .amdhsa_kernarg_size 104
  .amdhsa_user_sgpr_count 2
  .amdhsa_user_sgpr_kernarg_segment_ptr 1
  .amdhsa_system_sgpr_workgroup_id_x 1
.end_amdhsa_kernel
"""

def khead(name):
    return f""".globl {name}
.p2align 8
.type {name},@function
{name}:
"""

def xsum4(x, t):
    return [f"v_mov_b32 v{t}, v{x}", "s_nop 1", f"v_permlane32_swap_b32 v{x}, v{t}", f"v_add_f32 v{x}, v{x}, v{t}",
            f"v_mov_b32 v{t}, v{x}", "s_nop 1", f"v_permlane16_swap_b32 v{x}, v{t}", f"v_add_f32 v{x}, v{x}, v{t}"]

def code_prefetch(name, end_label, vtmp, stmp, nlines):
    o = [f"s_getpc_b64 s[{stmp}:{stmp+1}]",
         f"v_and_b32 v{vtmp}, 63, v0", f"v_lshlrev_b32 v{vtmp}, 7, v{vtmp}"]
    return o

import os
STAMPS = os.environ.get("STAMPS", "0") == "1"
STAMP_OFF = 0x8000000
STAMP_SEL = os.environ.get("STAMP_SEL", "")
def _slot(i):
    if isinstance(i, str):
        sel = STAMP_SEL.split(",")
        return sel.index(i) + 2 if i in sel else None
    return i
def stamp(i):
    i = _slot(i)
    if not STAMPS or i is None: return []
    return [Ins(f"s_memtime s[{80+2*i if i < 9 else 100}:{81+2*i if i < 9 else 101}]")]
def stamp_rt(i):
    if not STAMPS: return []
    return [Ins(f"s_memrealtime s[{80+2*i if i < 9 else 100}:{81+2*i if i < 9 else 101}]")]
def stamp_dump(kidx, n, sw, wsptr, vt=4):
    if not STAMPS: return []
    o = ["s_waitcnt lgkmcnt(0)",
         f"s_add_u32 s4, s{wsptr}, {hex(STAMP_OFF + kidx*0x10000)}", f"s_addc_u32 s5, s{wsptr+1}, 0", "s_mov_b32 s6, 0x10000", "s_mov_b32 s7, 0x00020000",
         f"s_lshl_b32 s8, s2, 2", f"s_add_u32 s8, s8, s{sw}", "s_lshl_b32 s8, s8, 6", f"v_mov_b32 v{vt}, s8"]
    for i in range(n):
        o += [f"v_mov_b32 v{vt+1}, s{80+2*i if i < 9 else 100}", f"buffer_store_dword v{vt+1}, v{vt}, s[4:7], 0 offen offset:{4*i}", "s_nop 1"]
    o.append("s_waitcnt vmcnt(0)")
    return [Ins(x) for x in o]
```

```python
from asmlib import *

XN_OFF   = 0x0000000
H_OFF    = 0x0200000
ST_OFF   = 0x0400000
CS_OFF   = 0x0420000
WGU_OFF  = 0x0500000
ACT_OFF  = 0x0900000
CTX_OFF  = 0x1000000
KV_OFF   = 0x2000000
XN_SZ, H_SZ, ST_SZ, CS_SZ = 0x200000, 0x200000, 0x20000, 8*7168
WGU_SZ, ACT_SZ, CTX_SZ, KV_SZ = 112*32768, 32*56*4096, 0x1000000, 0x2000000

FL_OFF, FL_SZ = 0x0480000, 0x12000
FL_XN, FL_KV, FL_H, FL_ACT, FL_CTX = 0, 0x2000, 0x4000, 0x6000, 0xa000
WO_OFF, WO_SZ = 0x4000000, 8*128*4096
WD_OFF, WD_SZ = 0x4400000, 8*56*4096
import os
ALIAS = int(os.environ.get("ALIAS", "1"))
ACT_TILE, ACT_WAVE, ACT_BASE = (128*4096, 32*4096, 18*4096) if ALIAS else (56*4096, 14*4096, 0)
A_X, A_CKV, A_WQ, A_WUK, A_WUV, A_WO, A_BX, A_WG, A_WU, A_WD, A_OUT, A_DBG, A_WS = [8*i for i in range(13)]

QSCALE = 1.4426950408889634 / (128 ** 0.5)

import struct
def f32(x):
    return "0x%08x" % struct.unpack("<I", struct.pack("<f", x))[0]

def srd_from(dst, ptr, size, off=0):
    o = []
    if off:
        o.append(f"s_add_u32 s{dst}, s{ptr}, {hex(off)}")
        o.append(f"s_addc_u32 s{dst+1}, s{ptr+1}, 0")
    else:
        o.append(f"s_mov_b32 s{dst}, s{ptr}")
        o.append(f"s_mov_b32 s{dst+1}, s{ptr+1}")
    o.append(f"s_mov_b32 s{dst+2}, {hex(size)}")
    o.append(f"s_mov_b32 s{dst+3}, 0x00020000")
    return "\n".join(o) + "\n"

def vr(b, n=4): return f"v[{b}:{b+n-1}]"
def ar(b, n=4): return f"a[{b}:{b+n-1}]"

def mfma(d, a, b, c):
    return Ins(f"v_mfma_f32_16x16x32_bf16 {d}, {a}, {b}, {c}")

def kdesc(name, vgpr=512, accum=256, sgpr=102):
    return f""".amdhsa_kernel {name}
  .amdhsa_next_free_vgpr {vgpr}
  .amdhsa_next_free_sgpr {sgpr}
  .amdhsa_accum_offset {accum}
  .amdhsa_group_segment_fixed_size 0
  .amdhsa_kernarg_size 104
  .amdhsa_user_sgpr_count 2
  .amdhsa_user_sgpr_kernarg_segment_ptr 1
  .amdhsa_system_sgpr_workgroup_id_x 1
.end_amdhsa_kernel
"""

def khead(name):
    return f""".globl {name}
.p2align 8
.type {name},@function
{name}:
"""

def xsum4(x, t):
    return [f"v_mov_b32 v{t}, v{x}", "s_nop 1", f"v_permlane32_swap_b32 v{x}, v{t}", f"v_add_f32 v{x}, v{x}, v{t}",
            f"v_mov_b32 v{t}, v{x}", "s_nop 1", f"v_permlane16_swap_b32 v{x}, v{t}", f"v_add_f32 v{x}, v{x}, v{t}"]

def code_prefetch(name, end_label, vtmp, stmp, nlines):
    o = [f"s_getpc_b64 s[{stmp}:{stmp+1}]",
         f"v_and_b32 v{vtmp}, 63, v0", f"v_lshlrev_b32 v{vtmp}, 7, v{vtmp}"]
    return o

import os
STAMPS = os.environ.get("STAMPS", "0") == "1"
STAMP_OFF = 0x8000000
STAMP_SEL = os.environ.get("STAMP_SEL", "")
def _slot(i):
    if isinstance(i, str):
        sel = STAMP_SEL.split(",")
        return sel.index(i) + 2 if i in sel else None
    return i
def stamp(i):
    i = _slot(i)
    if not STAMPS or i is None: return []
    op = "s_memrealtime" if (os.environ.get("RT", "1") == "1" and i > 1) else "s_memtime"
    return [Ins(f"{op} s[{80+2*i if i < 9 else 100}:{81+2*i if i < 9 else 101}]")]
def stamp_rt(i):
    if not STAMPS: return []
    return [Ins(f"s_memrealtime s[{80+2*i if i < 9 else 100}:{81+2*i if i < 9 else 101}]")]
def stamp_dump(kidx, n, sw, wsptr, vt=4):
    if not STAMPS: return []
    o = ["s_waitcnt lgkmcnt(0)",
         f"s_add_u32 s4, s{wsptr}, {hex(STAMP_OFF + kidx*0x10000)}", f"s_addc_u32 s5, s{wsptr+1}, 0", "s_mov_b32 s6, 0x10000", "s_mov_b32 s7, 0x00020000",
         f"s_lshl_b32 s8, s2, 2", f"s_add_u32 s8, s8, s{sw}", "s_lshl_b32 s8, s8, 6", f"v_mov_b32 v{vt}, s8"]
    for i in range(n):
        o += [f"v_mov_b32 v{vt+1}, s{80+2*i if i < 9 else 100}", f"buffer_store_dword v{vt+1}, v{vt}, s[4:7], 0 offen offset:{4*i}", "s_nop 1"]
    o.append("s_waitcnt vmcnt(0)")
    return [Ins(x) for x in o]
```

```python
import sys, os
sys.path.insert(0, os.path.dirname(__file__))
from common import *
import importlib

HEADER = open(os.path.join(os.path.dirname(__file__), "..", "cdna_kernels",
    "sequential_preLN__compressed_kv_cla__geglu_ffn__prompt.s.ref")).read().split("; Override launch")[0]

def build(gens, out):
    texts, descs, launches, allerrs = [], [], [], []
    for g in gens:
        t, d, l, errs = g
        texts.append(t); descs.append(d); launches.append(l); allerrs += errs
    s = HEADER + "\n".join(launches) + "\n"
    s += '.amdgcn_target "amdgcn-amd-amdhsa--gfx950"\n.text\n'
    s += "".join(texts)
    s += "L_text_end:\n"
    s += '.section .rodata,"a"\n'
    for d in descs:
        s += ".p2align 6\n" + d
    last = None
    for l in s.splitlines():
        l = l.strip()
        if not l or l[0] in ";." or l.endswith(":"): continue
        try: i = Ins(l)
        except Exception: continue
        if "scc" in i.rd:
            ok = last and ((i.op == "s_addc_u32" and last.op == "s_add_u32" and int(last.wr[0][1:]) + 1 == int(i.wr[0][1:]))
                           or (i.op != "s_addc_u32" and (last.op.startswith("s_cmp") or last.op.startswith("s_bitcmp") or "vcc" in last.rd)))
            if not ok: allerrs.append(f"SCC chain: `{l}` after `{last.text}`")
        if "scc" in i.wr: last = i
    open(out, "w").write(s)
    if allerrs:
        print("\n".join(allerrs[:60]))
        print("HAZARD/WAIT ERRORS:", len(allerrs))
    print("wrote", out, len(s), "bytes")
    return allerrs

if __name__ == "__main__":
    out = sys.argv[1]
    mods = sys.argv[2:]
    gens = []
    for m in mods:
        mod, _, fn = m.partition(":")
        M = importlib.import_module(mod)
        gens.append(getattr(M, fn or "gen")())
    e = build(gens, out)
    sys.exit(1 if e else 0)
```

```python
from asmlib import *

XN_OFF   = 0x0000000
H_OFF    = 0x0200000
ST_OFF   = 0x0400000
CS_OFF   = 0x0420000
WGU_OFF  = 0x0500000
ACT_OFF  = 0x0900000
CTX_OFF  = 0x1000000
KV_OFF   = 0x2000000
XN_SZ, H_SZ, ST_SZ, CS_SZ = 0x200000, 0x200000, 0x20000, 8*7168
WGU_SZ, ACT_SZ, CTX_SZ, KV_SZ = 112*32768, 32*56*4096, 0x1000000, 0x2000000

FL_OFF, FL_SZ = 0x0480000, 0x12000
FL_XN, FL_KV, FL_H, FL_ACT, FL_CTX = 0, 0x2000, 0x4000, 0x6000, 0xa000
WO_OFF, WO_SZ = 0x4000000, 8*128*4096
WD_OFF, WD_SZ = 0x4400000, 8*56*4096
import os
ALIAS = int(os.environ.get("ALIAS", "1"))
ACT_TILE, ACT_WAVE, ACT_BASE = (128*4096, 32*4096, 18*4096) if ALIAS else (56*4096, 14*4096, 0)
WSB = int(os.environ.get('WSB', '0xB000000'), 0)
A_X, A_CKV, A_WQ, A_WUK, A_WUV, A_WO, A_BX, A_WG, A_WU, A_WD, A_OUT, A_DBG, A_WS = [8*i for i in range(13)]

QSCALE = 1.4426950408889634 / (128 ** 0.5)

import struct
def f32(x):
    return "0x%08x" % struct.unpack("<I", struct.pack("<f", x))[0]

def srd_from(dst, ptr, size, off=0):
    o = []
    if off:
        o.append(f"s_add_u32 s{dst}, s{ptr}, {hex(off)}")
        o.append(f"s_addc_u32 s{dst+1}, s{ptr+1}, 0")
    else:
        o.append(f"s_mov_b32 s{dst}, s{ptr}")
        o.append(f"s_mov_b32 s{dst+1}, s{ptr+1}")
    o.append(f"s_mov_b32 s{dst+2}, {hex(size)}")
    o.append(f"s_mov_b32 s{dst+3}, 0x00020000")
    return "\n".join(o) + "\n"

def vr(b, n=4): return f"v[{b}:{b+n-1}]"
def ar(b, n=4): return f"a[{b}:{b+n-1}]"

def mfma(d, a, b, c):
    return Ins(f"v_mfma_f32_16x16x32_bf16 {d}, {a}, {b}, {c}")

def kdesc(name, vgpr=512, accum=256, sgpr=102):
    return f""".amdhsa_kernel {name}
  .amdhsa_next_free_vgpr {vgpr}
  .amdhsa_next_free_sgpr {sgpr}
  .amdhsa_accum_offset {accum}
  .amdhsa_group_segment_fixed_size 0
  .amdhsa_kernarg_size 104
  .amdhsa_user_sgpr_count 2
  .amdhsa_user_sgpr_kernarg_segment_ptr 1
  .amdhsa_system_sgpr_workgroup_id_x 1
.end_amdhsa_kernel
"""

def khead(name):
    return f""".globl {name}
.p2align 8
.type {name},@function
{name}:
"""

def xsum4(x, t):
    return [f"v_mov_b32 v{t}, v{x}", "s_nop 1", f"v_permlane32_swap_b32 v{x}, v{t}", f"v_add_f32 v{x}, v{x}, v{t}",
            f"v_mov_b32 v{t}, v{x}", "s_nop 1", f"v_permlane16_swap_b32 v{x}, v{t}", f"v_add_f32 v{x}, v{x}, v{t}"]

def code_prefetch(name, end_label, vtmp, stmp, nlines):
    o = [f"s_getpc_b64 s[{stmp}:{stmp+1}]",
         f"v_and_b32 v{vtmp}, 63, v0", f"v_lshlrev_b32 v{vtmp}, 7, v{vtmp}"]
    return o

import os
STAMPS = os.environ.get("STAMPS", "0") == "1"
STAMP_OFF = 0x4800000
STAMP_SEL = os.environ.get("STAMP_SEL", "")
def _slot(i):
    if isinstance(i, str):
        sel = STAMP_SEL.split(",")
        return sel.index(i) + 2 if i in sel else None
    return i
def stamp(i):
    i = _slot(i)
    if not STAMPS or i is None: return []
    op = "s_memrealtime" if (os.environ.get("RT", "1") == "1" and i > 1) else "s_memtime"
    return [Ins(f"{op} s[{80+2*i if i < 9 else 100}:{81+2*i if i < 9 else 101}]")]
def stamp_rt(i):
    if not STAMPS: return []
    return [Ins(f"s_memrealtime s[{80+2*i if i < 9 else 100}:{81+2*i if i < 9 else 101}]")]
def stamp_dump(kidx, n, sw, wsptr, vt=4):
    if not STAMPS: return []
    if os.environ.get("DBGWG"):
        base = 80 if os.environ.get("RT", "1") == "1" else 82
        o = [f"s_load_dwordx2 s[4:5], s[0:1], {A_DBG}", "s_waitcnt lgkmcnt(0)", "s_mov_b32 s6, 256", "s_mov_b32 s7, 0x00020000",
             f"s_cmp_eq_u32 s2, {os.environ['DBGWG']}", "s_cselect_b32 s8, 0, 0x1000", f"s_lshl_b32 s9, s{sw}, 12", "s_add_u32 s8, s8, s9", f"v_mov_b32 v{vt}, s8"]
        for i in range(2, 10):
            o += [f"s_sub_u32 s9, s{80+2*i if i < 9 else 100}, s{base if i < 9 else 80}", f"v_mov_b32 v{vt+1}, s9", f"buffer_store_dword v{vt+1}, v{vt}, s[4:7], 0 offen offset:{4*i}", "s_nop 1"]
        return [Ins(x) for x in o + ["s_waitcnt vmcnt(0)"]]
    o = ["s_waitcnt lgkmcnt(0)",
         f"s_add_u32 s4, s{wsptr}, {hex(STAMP_OFF + kidx*0x10000)}", f"s_addc_u32 s5, s{wsptr+1}, 0", "s_mov_b32 s6, 0x10000", "s_mov_b32 s7, 0x00020000",
         f"s_lshl_b32 s8, s2, 2", f"s_add_u32 s8, s8, s{sw}", "s_lshl_b32 s8, s8, 6", f"v_mov_b32 v{vt}, s8"]
    for i in range(n):
        o += [f"v_mov_b32 v{vt+1}, s{80+2*i if i < 9 else 100}", f"buffer_store_dword v{vt+1}, v{vt}, s[4:7], 0 offen offset:{4*i}", "s_nop 1"]
    o.append("s_waitcnt vmcnt(0)")
    return [Ins(x) for x in o]
```

```python
from asmlib import *

XN_OFF   = 0x0000000
H_OFF    = 0x0200000
ST_OFF   = 0x0400000
CS_OFF   = 0x0420000
WGU_OFF  = 0x0500000
ACT_OFF  = 0x0900000
CTX_OFF  = 0x1000000
KV_OFF   = 0x2000000
XN_SZ, H_SZ, ST_SZ, CS_SZ = 0x200000, 0x200000, 0x20000, 8*7168
WGU_SZ, ACT_SZ, CTX_SZ, KV_SZ = 112*32768, 32*56*4096, 0x1000000, 0x2000000

FL_OFF, FL_SZ = 0x0480000, 0x14000
FL_XN, FL_KV, FL_H, FL_ACT, FL_CTX, FL_HD = 0, 0x2000, 0x4000, 0x6000, 0xa000, 0x12000
WO_OFF, WO_SZ = 0x4000000, 8*128*4096
WD_OFF, WD_SZ = 0x4400000, 8*56*4096
import os
ALIAS = int(os.environ.get("ALIAS", "1"))
ACT_TILE, ACT_WAVE, ACT_BASE = (128*4096, 32*4096, 18*4096) if ALIAS else (56*4096, 14*4096, 0)
HB_OFF, HB_STR = (KV_OFF, 0x100000) if ALIAS else (H_OFF, 0x11000)
WSB = int(os.environ.get('WSB', '0xB000000'), 0)
A_X, A_CKV, A_WQ, A_WUK, A_WUV, A_WO, A_BX, A_WG, A_WU, A_WD, A_OUT, A_DBG, A_WS = [8*i for i in range(13)]

QSCALE = 1.4426950408889634 / (128 ** 0.5)

import struct
def f32(x):
    return "0x%08x" % struct.unpack("<I", struct.pack("<f", x))[0]

def srd_from(dst, ptr, size, off=0):
    o = []
    if off:
        o.append(f"s_add_u32 s{dst}, s{ptr}, {hex(off)}")
        o.append(f"s_addc_u32 s{dst+1}, s{ptr+1}, 0")
    else:
        o.append(f"s_mov_b32 s{dst}, s{ptr}")
        o.append(f"s_mov_b32 s{dst+1}, s{ptr+1}")
    o.append(f"s_mov_b32 s{dst+2}, {hex(size)}")
    o.append(f"s_mov_b32 s{dst+3}, 0x00020000")
    return "\n".join(o) + "\n"

def vr(b, n=4): return f"v[{b}:{b+n-1}]"
def ar(b, n=4): return f"a[{b}:{b+n-1}]"

def mfma(d, a, b, c):
    return Ins(f"v_mfma_f32_16x16x32_bf16 {d}, {a}, {b}, {c}")

def kdesc(name, vgpr=512, accum=256, sgpr=102):
    return f""".amdhsa_kernel {name}
  .amdhsa_next_free_vgpr {vgpr}
  .amdhsa_next_free_sgpr {sgpr}
  .amdhsa_accum_offset {accum}
  .amdhsa_group_segment_fixed_size 0
  .amdhsa_kernarg_size 104
  .amdhsa_user_sgpr_count 2
  .amdhsa_user_sgpr_kernarg_segment_ptr 1
  .amdhsa_system_sgpr_workgroup_id_x 1
.end_amdhsa_kernel
"""

def khead(name):
    return f""".globl {name}
.p2align 8
.type {name},@function
{name}:
"""

def xsum4(x, t):
    return [f"v_mov_b32 v{t}, v{x}", "s_nop 1", f"v_permlane32_swap_b32 v{x}, v{t}", f"v_add_f32 v{x}, v{x}, v{t}",
            f"v_mov_b32 v{t}, v{x}", "s_nop 1", f"v_permlane16_swap_b32 v{x}, v{t}", f"v_add_f32 v{x}, v{x}, v{t}"]

def code_prefetch(name, end_label, vtmp, stmp, nlines):
    o = [f"s_getpc_b64 s[{stmp}:{stmp+1}]",
         f"v_and_b32 v{vtmp}, 63, v0", f"v_lshlrev_b32 v{vtmp}, 7, v{vtmp}"]
    return o

import os
STAMPS = os.environ.get("STAMPS", "0") == "1"
STAMP_OFF = 0x4800000
STAMP_SEL = os.environ.get("STAMP_SEL", "")
def _slot(i):
    if isinstance(i, str):
        sel = STAMP_SEL.split(",")
        return sel.index(i) + 2 if i in sel else None
    return i
def stamp(i):
    named = isinstance(i, str)
    i = _slot(i)
    if not STAMPS or i is None: return []
    if named and os.environ.get("RT") == "2":
        j = 2 + 2*(i - 2)
        return [Ins(f"s_memrealtime s[{80+2*j}:{81+2*j}]"), Ins(f"s_memtime s[{82+2*j}:{83+2*j}]")]
    op = "s_memrealtime" if (os.environ.get("RT", "1") == "1" and i > 1) else "s_memtime"
    return [Ins(f"{op} s[{80+2*i if i < 9 else 100}:{81+2*i if i < 9 else 101}]")]
def stamp_rt(i):
    if not STAMPS: return []
    return [Ins(f"s_memrealtime s[{80+2*i if i < 9 else 100}:{81+2*i if i < 9 else 101}]")]
def stamp_dump(kidx, n, sw, wsptr, vt=4):
    if not STAMPS: return []
    if os.environ.get("DBGWG"):
        base = 80 if os.environ.get("RT", "1") == "1" else 82
        o = [f"s_load_dwordx2 s[4:5], s[0:1], {A_DBG}", "s_waitcnt lgkmcnt(0)", "s_mov_b32 s6, 256", "s_mov_b32 s7, 0x00020000",
             f"s_cmp_eq_u32 s2, {os.environ['DBGWG']}", "s_cselect_b32 s8, 0, 0x1000", f"s_lshl_b32 s9, s{sw}, 12", "s_add_u32 s8, s8, s9", f"v_mov_b32 v{vt}, s8"]
        for i in range(2, 10):
            o += [f"s_sub_u32 s9, s{80+2*i if i < 9 else 100}, s{base if i < 9 else 80}", f"v_mov_b32 v{vt+1}, s9", f"buffer_store_dword v{vt+1}, v{vt}, s[4:7], 0 offen offset:{4*i}", "s_nop 1"]
        return [Ins(x) for x in o + ["s_waitcnt vmcnt(0)"]]
    o = ["s_waitcnt lgkmcnt(0)",
         f"s_add_u32 s4, s{wsptr}, {hex(STAMP_OFF + kidx*0x10000)}", f"s_addc_u32 s5, s{wsptr+1}, 0", "s_mov_b32 s6, 0x10000", "s_mov_b32 s7, 0x00020000",
         f"s_lshl_b32 s8, s2, 2", f"s_add_u32 s8, s8, s{sw}", "s_lshl_b32 s8, s8, 6", f"v_mov_b32 v{vt}, s8"]
    for i in range(n):
        o += [f"v_mov_b32 v{vt+1}, s{80+2*i if i < 9 else 100}", f"buffer_store_dword v{vt+1}, v{vt}, s[4:7], 0 offen offset:{4*i}", "s_nop 1"]
    o.append("s_waitcnt vmcnt(0)")
    return [Ins(x) for x in o]
```

```python
from asmlib import *

XN_OFF   = 0x0000000
H_OFF    = 0x0200000
ST_OFF   = 0x0400000
CS_OFF   = 0x0440000
WGU_OFF  = 0x0500000
ACT_OFF  = 0x0900000
CTX_OFF  = 0x1000000
KV_OFF   = 0x2000000
XN_SZ, H_SZ, ST_SZ, CS_SZ = 0x200000, 0x200000, 0x20000, 8*7168
WGU_SZ, ACT_SZ, CTX_SZ, KV_SZ = 112*32768, 32*56*4096, 0x1000000, 0x2000000

FL_OFF, FL_SZ = 0x0480000, 0x16000
FL_XN, FL_KV, FL_H, FL_ACT, FL_CTX, FL_X, FL_HD = 0, 0x2000, 0x4000, 0x8000, 0xc000, 0x10000, 0x14000
WO_OFF, WO_SZ = 0x4000000, 8*128*4096
WD_OFF, WD_SZ = 0x4400000, 8*56*4096
import os
ALIAS = int(os.environ.get("ALIAS", "1"))
ACT_TILE, ACT_WAVE, ACT_BASE = (128*4096, 32*4096, int(os.environ.get('AB0', '18'))*4096) if ALIAS else (56*4096, 14*4096, 0)
HB_OFF, HB_STR = (KV_OFF, 0x100000) if ALIAS else (H_OFF, 0x12000)
XB_OFF = CTX_OFF if ALIAS else 0x4900000
WSB = int(os.environ.get('WSB', '0xB000000' if ALIAS else '0x9000000'), 0)
A_X, A_CKV, A_WQ, A_WUK, A_WUV, A_WO, A_BX, A_WG, A_WU, A_WD, A_OUT, A_DBG, A_WS = [8*i for i in range(13)]

QSCALE = 1.4426950408889634 / (128 ** 0.5)

import struct
def f32(x):
    return "0x%08x" % struct.unpack("<I", struct.pack("<f", x))[0]

def srd_from(dst, ptr, size, off=0):
    o = []
    if off:
        o.append(f"s_add_u32 s{dst}, s{ptr}, {hex(off)}")
        o.append(f"s_addc_u32 s{dst+1}, s{ptr+1}, 0")
    else:
        o.append(f"s_mov_b32 s{dst}, s{ptr}")
        o.append(f"s_mov_b32 s{dst+1}, s{ptr+1}")
    o.append(f"s_mov_b32 s{dst+2}, {hex(size)}")
    o.append(f"s_mov_b32 s{dst+3}, 0x00020000")
    return "\n".join(o) + "\n"

def vr(b, n=4): return f"v[{b}:{b+n-1}]"
def ar(b, n=4): return f"a[{b}:{b+n-1}]"

def mfma(d, a, b, c):
    return Ins(f"v_mfma_f32_16x16x32_bf16 {d}, {a}, {b}, {c}")

def kdesc(name, vgpr=512, accum=256, sgpr=102):
    return f""".amdhsa_kernel {name}
  .amdhsa_next_free_vgpr {vgpr}
  .amdhsa_next_free_sgpr {sgpr}
  .amdhsa_accum_offset {accum}
  .amdhsa_group_segment_fixed_size 0
  .amdhsa_kernarg_size 104
  .amdhsa_user_sgpr_count 2
  .amdhsa_user_sgpr_kernarg_segment_ptr 1
  .amdhsa_system_sgpr_workgroup_id_x 1
.end_amdhsa_kernel
"""

def khead(name):
    return f""".globl {name}
.p2align 8
.type {name},@function
{name}:
"""

def xsum4(x, t):
    return [f"v_mov_b32 v{t}, v{x}", "s_nop 1", f"v_permlane32_swap_b32 v{x}, v{t}", f"v_add_f32 v{x}, v{x}, v{t}",
            f"v_mov_b32 v{t}, v{x}", "s_nop 1", f"v_permlane16_swap_b32 v{x}, v{t}", f"v_add_f32 v{x}, v{x}, v{t}"]

def code_prefetch(name, end_label, vtmp, stmp, nlines):
    o = [f"s_getpc_b64 s[{stmp}:{stmp+1}]",
         f"v_and_b32 v{vtmp}, 63, v0", f"v_lshlrev_b32 v{vtmp}, 7, v{vtmp}"]
    return o

import os
STAMPS = os.environ.get("STAMPS", "0") == "1"
STAMP_OFF = 0x4800000
STAMP_SEL = os.environ.get("STAMP_SEL", "")
def _slot(i):
    if isinstance(i, str):
        sel = STAMP_SEL.split(",")
        return sel.index(i) + 2 if i in sel else None
    return i
def stamp(i):
    named = isinstance(i, str)
    i = _slot(i)
    if not STAMPS or i is None: return []
    if named and os.environ.get("RT") == "2":
        j = 2 + 2*(i - 2)
        return [Ins(f"s_memrealtime s[{80+2*j}:{81+2*j}]"), Ins(f"s_memtime s[{82+2*j}:{83+2*j}]")]
    op = "s_memrealtime" if (os.environ.get("RT", "1") == "1" and i > 1) else "s_memtime"
    return [Ins(f"{op} s[{80+2*i if i < 9 else 100}:{81+2*i if i < 9 else 101}]")]
def stamp_rt(i):
    if not STAMPS: return []
    return [Ins(f"s_memrealtime s[{80+2*i if i < 9 else 100}:{81+2*i if i < 9 else 101}]")]
def stamp_dump(kidx, n, sw, wsptr, vt=4):
    if not STAMPS: return []
    if os.environ.get("DBGWG"):
        base = 80 if os.environ.get("RT", "1") == "1" else 82
        o = [f"s_load_dwordx2 s[4:5], s[0:1], {A_DBG}", "s_waitcnt lgkmcnt(0)", "s_mov_b32 s6, 256", "s_mov_b32 s7, 0x00020000",
             f"s_cmp_eq_u32 s2, {os.environ['DBGWG']}", "s_cselect_b32 s8, 0, 0x1000", f"s_lshl_b32 s9, s{sw}, 12", "s_add_u32 s8, s8, s9", f"v_mov_b32 v{vt}, s8"]
        for i in range(2, 10):
            o += [f"s_sub_u32 s9, s{80+2*i if i < 9 else 100}, s{base if i < 9 else 80}", f"v_mov_b32 v{vt+1}, s9", f"buffer_store_dword v{vt+1}, v{vt}, s[4:7], 0 offen offset:{4*i}", "s_nop 1"]
        return [Ins(x) for x in o + ["s_waitcnt vmcnt(0)"]]
    o = ["s_waitcnt lgkmcnt(0)",
         f"s_add_u32 s4, s{wsptr}, {hex(STAMP_OFF + kidx*0x10000)}", f"s_addc_u32 s5, s{wsptr+1}, 0", "s_mov_b32 s6, 0x10000", "s_mov_b32 s7, 0x00020000",
         f"s_lshl_b32 s8, s2, 2", f"s_add_u32 s8, s8, s{sw}", "s_lshl_b32 s8, s8, 6", f"v_mov_b32 v{vt}, s8"]
    for i in range(n):
        o += [f"v_mov_b32 v{vt+1}, s{80+2*i if i < 9 else 100}", f"buffer_store_dword v{vt+1}, v{vt}, s[4:7], 0 offen offset:{4*i}", "s_nop 1"]
    o.append("s_waitcnt vmcnt(0)")
    return [Ins(x) for x in o]
```

```python
import re

TRANS = ("v_exp_f32", "v_log_f32", "v_rcp_f32", "v_rsq_f32", "v_sqrt_f32", "v_sin_f32", "v_cos_f32")


def _regs(tok):
    tok = tok.strip()
    neg = tok.lstrip("-")
    if neg.startswith("abs(") or neg.startswith("|"):
        neg = neg.replace("abs(", "").replace(")", "").replace("|", "")
    tok = neg
    m = re.fullmatch(r"([vas])\[(\d+):(\d+)\]", tok)
    if m:
        return [f"{m.group(1)}{i}" for i in range(int(m.group(2)), int(m.group(3)) + 1)]
    m = re.fullmatch(r"([vas])(\d+)", tok)
    if m:
        return [tok]
    if tok == "vcc":
        return ["vcc"]
    if tok in ("vcc_lo", "vcc_hi"):
        return ["vcc"]
    if tok == "exec":
        return ["exec"]
    if tok == "m0":
        return ["m0"]
    return []


class Ins:
    __slots__ = ("text", "op", "kind", "rd", "wr", "dpp", "tag", "srcc", "passes", "nop", "cost", "wide")

    def __init__(self, text, tag=None):
        self.text = text.strip()
        self.tag = tag
        self.dpp = False
        self.srcc = []
        self.passes = 0
        self.nop = 1
        self.wide = False
        t = self.text.split(";")[0].strip()
        if t.endswith(":") or t.startswith(".") or t == "":
            self.op = ""
            self.kind = "label"
            self.rd = []
            self.wr = []
            self.nop = 0
            return
        parts = t.split(None, 1)
        op = parts[0]
        self.op = op
        rest = parts[1] if len(parts) > 1 else ""
        ops = [o.strip() for o in rest.split(",")] if rest else []
        mods = ""
        if ops:
            last = ops[-1].split(None, 1)
            ops[-1] = last[0] if last else ""
            mods = last[1] if len(last) > 1 else ""
        R = [_regs(o) for o in ops]
        flat = lambda l: [x for y in l for x in y]
        rd, wr = [], []
        if op.startswith("v_smfmac"):
            self.kind = "mfma"
            wr = R[0]
            rd = R[1] + R[2] + R[3] + R[0]
            self.srcc = R[0]
            self.passes = 4
        elif op.startswith("v_mfma"):
            self.kind = "mfma"
            wr = R[0]
            rd = R[1] + R[2] + R[3]
            self.srcc = R[3]
            self.passes = 4 if "16x16x32" in op else 8
        elif op.startswith("ds_read") or op.startswith("ds_bpermute") or op.startswith("ds_swizzle"):
            self.kind = "dsr"
            wr = R[0]
            rd = flat(R[1:])
        elif op.startswith("ds_write") or op.startswith("ds_or") or op.startswith("ds_add"):
            self.kind = "dsw"
            rd = flat(R)
        elif op.startswith("buffer_load") and re.search(r"\blds\b", mods):
            self.kind = "dma"
            rd = flat(R) + ["m0"]
        elif op.startswith("global_load_lds"):
            self.kind = "dma"
            rd = flat(R) + ["m0"]
        elif op.startswith("buffer_load") or op.startswith("global_load"):
            self.kind = "vld"
            wr = R[0]
            rd = flat(R[1:])
        elif op.startswith("buffer_store") or op.startswith("global_store"):
            self.kind = "vst"
            rd = flat(R)
            self.wide = "x4" in op or "x3" in op
        elif op.startswith("buffer_atomic") or op.startswith("global_atomic"):
            if re.search(r"\bsc0\b", mods):
                self.kind = "vld"
                wr = R[0]
                rd = flat(R)
            else:
                self.kind = "vst"
                rd = flat(R)
        elif op.startswith("buffer_inv") or op.startswith("buffer_wbl2"):
            self.kind = "vst"
        elif op.startswith("s_load") or op.startswith("s_memtime") or op.startswith("s_memrealtime"):
            self.kind = "smem"
            wr = R[0]
            rd = flat(R[1:])
        elif op == "s_waitcnt":
            self.kind = "wait"
        elif op == "s_barrier":
            self.kind = "barrier"
        elif op == "s_nop":
            self.kind = "nop"
            self.nop = int(ops[0], 0) + 1
        elif op.startswith("s_cbranch") or op == "s_branch" or op == "s_endpgm" or op == "s_setprio" or op == "s_sleep":
            self.kind = "branch"
            if "scc" in op:
                rd = ["scc"]
            if "vcc" in op:
                rd = ["vcc"]
            if "exec" in op:
                rd = ["exec"]
        elif op.startswith("s_cmp") or op.startswith("s_bitcmp"):
            self.kind = "salu"
            rd = flat(R)
            wr = ["scc"]
        elif op.startswith("s_setpc"):
            self.kind = "branch"
            rd = flat(R)
        elif op.startswith("s_"):
            self.kind = "salu"
            wr = list(R[0])
            rd = flat(R[1:])
            if op.startswith("s_cselect") or op.startswith("s_addc") or op.startswith("s_subb"):
                rd.append("scc")
            if "saveexec" in op:
                wr.append("exec")
                rd.append("exec")
            if op.startswith("s_addk") or op.startswith("s_mulk"):
                rd += R[0]
            if not (op.startswith("s_mov") or op.startswith("s_cselect") or op.startswith("s_mul") or op.startswith("s_getpc") or op.startswith("s_getreg")):
                wr.append("scc")
        elif op.startswith("v_"):
            base = op.replace("_e32", "").replace("_e64", "").replace("_dpp", "")
            self.kind = "trans" if base in TRANS else "valu"
            if "permlane" in op and "swap" in op:
                wr = R[0] + R[1]
                rd = R[0] + R[1]
            elif base in ("v_add_co_u32", "v_sub_co_u32", "v_addc_co_u32"):
                wr = R[0] + R[1]
                rd = flat(R[2:])
            else:
                wr = R[0]
                rd = flat(R[1:])
                if base.startswith("v_fmac") or base.startswith("v_dot2c"):
                    rd = rd + R[0]
                if base.startswith("v_cndmask") and len(ops) == 3:
                    rd.append("vcc")
            if re.search(r"row_|quad_perm|wave_", mods):
                self.dpp = True
                rd = rd + R[0]
        else:
            raise ValueError("unknown instruction: " + text)
        self.rd = rd
        self.wr = wr

    def __repr__(self):
        return self.text


def I(text, tag=None):
    return Ins(text, tag)


class CheckError(Exception):
    pass


def check_trace(trace, name="", verbose=False, init_pending=None):
    errs = []
    n = len(trace)
    pos = [0] * (n + 1)
    for i, ins in enumerate(trace):
        pos[i + 1] = pos[i] + ins.nop

    def dist(j, i):
        return pos[i] - pos[j + 1]

    last_valu_w = {}
    last_trans_w = {}
    last_mfma_w = {}
    last_mfma_c = {}
    last_salu_w = {}
    last_store_r = {}
    lg = []
    vm = []

    def err(i, msg):
        errs.append(f"[{name}] @{i} `{trace[i].text}`: {msg}")

    for i, ins in enumerate(trace):
        k = ins.kind
        if k == "label":
            if ins.text.startswith("; REQUIRE_LANDED"):
                tg = ins.text.split()[2]
                for (j, regs, t) in vm:
                    if t == tg:
                        err(i, f"vm op {j} `{trace[j].text}` tag {tg} still outstanding")
            if ins.text.startswith("; REQUIRE_LGKM0"):
                if lg:
                    err(i, "lgkm ops outstanding")
            continue
        if k == "wait":
            m = re.search(r"vmcnt\((\d+)\)", ins.text)
            if m:
                c = int(m.group(1))
                if c > 63:
                    err(i, "vmcnt > 63")
                while len(vm) > c:
                    vm.pop(0)
            m = re.search(r"lgkmcnt\((\d+)\)", ins.text)
            if m:
                c = int(m.group(1))
                if c > 15:
                    err(i, "lgkmcnt > 15")
                if c == 0:
                    lg.clear()
                else:
                    if any(s for (_, _, s) in lg):
                        pass
                    else:
                        while len(lg) > c:
                            lg.pop(0)
            continue
        touched = set(ins.rd) | set(ins.wr)
        for (j, regs, s) in lg:
            if touched & set(regs):
                err(i, f"touches pending lgkm dest of {j} `{trace[j].text}`")
        for (j, regs, t) in vm:
            if touched & set(regs) and not (k == "vld" and set(regs) <= set(ins.wr) and not set(ins.rd) & set(regs)):
                err(i, f"touches pending vm dest of {j} `{trace[j].text}`")
        isv = k in ("valu", "trans")
        for r in ins.rd:
            if k == "mfma":
                if r in last_valu_w and dist(last_valu_w[r], i) < 2:
                    err(i, f"VALU write {r} -> MFMA read <2")
                if r in last_mfma_w:
                    j = last_mfma_w[r]
                    p = trace[j]
                    d = dist(j, i)
                    ab = [x for x in ins.rd[: len(ins.rd) - len(ins.srcc)]]
                    if r in ab:
                        need = 8 if p.passes == 4 else 12
                        if d < need:
                            err(i, f"MFMA D {r} -> MFMA A/B read {d}<{need}")
                    elif r in ins.srcc:
                        if ins.srcc == p.wr and ins.passes == p.passes:
                            pass
                        else:
                            need = 6 if p.passes == 4 else 10
                            if d < need:
                                err(i, f"MFMA D {r} -> MFMA SrcC overlap {d}<{need}")
            else:
                if r in last_mfma_w:
                    j = last_mfma_w[r]
                    need = 8 if trace[j].passes == 4 else 12
                    if dist(j, i) < need:
                        err(i, f"MFMA D {r} -> read {dist(j,i)}<{need}")
            if r in last_trans_w and k != "trans" and dist(last_trans_w[r], i) < 1:
                err(i, f"trans result {r} used <1")
            if r in last_valu_w:
                d = dist(last_valu_w[r], i)
                if r[0] in "va" and r != "vcc":
                    if ins.dpp and d < 2:
                        err(i, f"VALU write {r} -> DPP read <2")
                    if "permlane" in ins.op and d < 2:
                        err(i, f"VALU write {r} -> permlane <2")
                    if ("readfirstlane" in ins.op or "readlane" in ins.op) and d < 1:
                        err(i, f"VALU write {r} -> readlane <1")
                else:
                    if isv and d < 2:
                        err(i, f"VALU write {r} -> VALU const read <2")
                    if k in ("vld", "vst", "dma") and d < 5:
                        err(i, f"VALU write {r} -> VMEM read <5")
                    if k in ("salu", "branch") and d < 1:
                        pass
            if r == "m0" and k == "dma" and "m0" in last_salu_w and dist(last_salu_w["m0"], i) < 1:
                err(i, "SALU m0 write -> DMA <1")
        for r in ins.wr:
            if k != "mfma" and r in last_mfma_w:
                j = last_mfma_w[r]
                need = 8 if trace[j].passes == 4 else 12
                if dist(j, i) < need:
                    err(i, f"MFMA D {r} -> overwrite {dist(j,i)}<{need}")
            if k == "mfma" and r in last_mfma_w:
                j = last_mfma_w[r]
                if not (ins.srcc == trace[j].wr):
                    need = 6 if trace[j].passes == 4 else 10
                    if dist(j, i) < need:
                        err(i, f"MFMA D {r} WAW unchained {dist(j,i)}<{need} (conservative)")
            if isv and r in last_mfma_c:
                j = last_mfma_c[r]
                need = 3 if trace[j].passes == 4 else 7
                if dist(j, i) < need:
                    err(i, f"MFMA SrcC {r} -> VALU overwrite <{need}")
            if r in last_store_r:
                d = dist(last_store_r[r], i)
                need = 2 if isv else 1
                if d < need:
                    err(i, f"wide store data {r} overwritten <{need}")
        for r in ins.wr:
            last_valu_w.pop(r, None)
            last_trans_w.pop(r, None)
            last_mfma_w.pop(r, None)
            last_salu_w.pop(r, None)
            if isv:
                last_valu_w[r] = i
                if k == "trans":
                    last_trans_w[r] = i
            elif k == "mfma":
                last_mfma_w[r] = i
            elif k == "salu":
                last_salu_w[r] = i
        if k == "mfma":
            for r in ins.srcc:
                last_mfma_c[r] = i
        if k == "vst" and ins.wide:
            for r in ins.rd[:4]:
                last_store_r[r] = i
        if k in ("dsr", "dsw"):
            lg.append((i, ins.wr, False))
            if len(lg) > 15 + 48:
                pass
        elif k == "smem":
            lg.append((i, ins.wr, True))
        elif k in ("vld", "vst", "dma"):
            vm.append((i, ins.wr, ins.tag))
            if len(vm) > 63:
                err(i, "more than 63 vm ops outstanding (counter saturates -> stalls)")
    return errs


class Bundle:
    def __init__(self, l):
        self.l = l
        self.kind = "bundle"


class Filler:
    __slots__ = ("ins", "lo", "hi", "prio", "sep")

    def __init__(self, ins, lo=0, hi=10**9, prio=0, sep=0):
        self.sep = sep
        if isinstance(ins, (list, tuple)):
            self.ins = Bundle([x if isinstance(x, Ins) else Ins(x) for x in ins])
        else:
            self.ins = ins if isinstance(ins, Ins) else Ins(ins)
        self.lo = lo
        self.hi = hi
        self.prio = prio


def cost(ins):
    k = ins.kind
    if k == "bundle":
        return 4 * (len(ins.l) - 1)
    if k == "trans":
        return 8
    if k == "valu":
        return 4
    if k in ("dsr", "dsw"):
        return 4
    if k in ("dma", "vld", "vst"):
        return 8
    return 0


def weave(mfmas, streams, budget=8, report=None):
    out = []
    for st in streams:
        for i in range(len(st) - 2, -1, -1):
            st[i].hi = min(st[i].hi, st[i + 1].hi)
            st[i].lo = min(st[i].lo, st[i].hi)
    ptr = [0] * len(streams)
    lastg = [-100] * len(streams)
    ng = len(mfmas)
    over = 0
    for g in range(ng):
        out.append(mfmas[g])
        left = budget
        head = []
        tail = []
        in_tail = set()
        used_first = False
        while True:
            cands = []
            for s, st in enumerate(streams):
                if ptr[s] < len(st) and st[ptr[s]].lo <= g and lastg[s] + st[ptr[s]].sep <= g:
                    f = st[ptr[s]]
                    cands.append((f.hi, -f.prio, s, f))
            if not cands:
                break
            cands.sort(key=lambda x: (x[0], x[1], x[2]))
            placed = False
            for (_, _, s, f) in cands:
                k = f.ins.kind
                c = cost(f.ins)
                forced = f.hi <= g
                if k == "label":
                    (tail if s in in_tail else head).append(f.ins)
                    placed = True
                elif k in ("valu", "trans"):
                    if c <= left or forced:
                        tail.append(f.ins)
                        in_tail.add(s)
                        left -= c
                        placed = True
                else:
                    if not used_first and s not in in_tail and (c <= left or (k == 'bundle' and left == budget)):
                        head.append(f.ins)
                        used_first = True
                        left -= c
                        placed = True
                    elif forced:
                        if s in in_tail:
                            tail.append(f.ins)
                            left -= c + (8 if c else 4)
                        else:
                            head.append(f.ins)
                            left -= c + (0 if c else 4)
                        used_first = True
                        placed = True
                if placed:
                    ptr[s] += 1
                    lastg[s] = g
                    break
            if not placed:
                break
        if left < 0:
            over += -left
        for x in head + tail:
            out += x.l if x.kind == "bundle" else [x]
    nleft = 0
    while True:
        cands = [(streams[s][ptr[s]].lo, s) for s in range(len(streams)) if ptr[s] < len(streams[s])]
        if not cands:
            break
        cands.sort()
        s = cands[0][1]
        f = streams[s][ptr[s]]
        if f.sep >= 2:
            out.append(Ins("s_nop 1"))
        out += f.ins.l if f.ins.kind == "bundle" else [f.ins]
        ptr[s] += 1
        nleft += 1
    if report:
        print(f"weave {report}: {ng} mfma, over-budget {over} cyc, left-over {nleft}")
    return out, over


class Prog:
    def __init__(self):
        self.blocks = {}
        self.order = []

    def block(self, name, ins):
        l = []
        if isinstance(ins, str):
            ins = [ins]
        for x in ins:
            if isinstance(x, str):
                for ln in x.strip("\n").split("\n"):
                    if ln.strip():
                        l.append(Ins(ln))
            else:
                l.append(x)
        self.blocks[name] = l
        self.order.append(name)
        return l

    def text(self):
        o = []
        for n in self.order:
            for ins in self.blocks[n]:
                t = ins.text
                o.append(t if (t.endswith(":") or t.startswith(".")) else "    " + t)
        return "\n".join(o) + "\n"

    def check(self, names, label=""):
        tr = []
        for n in names:
            tr += self.blocks[n]
        errs = check_trace(tr, label or ",".join(names))
        return errs


def L(text):
    return [Ins(ln) for ln in text.strip("\n").split("\n") if ln.strip()]


def dataflow(seq):
    last = {}
    reads = {}
    for ins in seq:
        if ins.kind in ("label", "wait", "nop", "barrier"):
            continue
        reads[id(ins)] = tuple(last.get(r) for r in ins.rd)
        for r in ins.wr:
            last[r] = id(ins)
    return reads, last


def check_equiv(ref, woven, name=""):
    ra, la = dataflow(ref)
    rb, lb = dataflow(woven)
    errs = []
    if set(ra) != set(rb):
        errs.append(f"[{name}] instruction sets differ: {len(ra)} vs {len(rb)}")
        return errs
    byid = {id(i): i for i in ref}
    for k in ra:
        if ra[k] != rb[k]:
            errs.append(f"[{name}] dataflow differs at `{byid[k].text}`")
    for r in la:
        if r != "scc" and la[r] != lb.get(r):
            errs.append(f"[{name}] final writer of {r} differs")
    return errs


def resolve_waits(seq):
    tags = []
    for ins in seq:
        if ins.kind in ("vld", "vst", "dma"):
            tags.append(ins.tag)
        elif ins.kind == "wait" and "@" in ins.text:
            m = re.search(r"vmcnt\(([^)]*)\)", ins.text)
            want = [t.strip()[1:] for t in m.group(1).split("|")]
            idx = [i for i, t in enumerate(tags) if t in want]
            n = len(tags) - 1 - max(idx) if idx else 63
            ins.text = ins.text.replace(m.group(0), f"vmcnt({min(n, 63)})")
    return seq


def bundles(seq):
    out = []
    i = 0
    seq = [x if isinstance(x, Ins) else Ins(x) for x in seq]
    while i < len(seq):
        x = seq[i]
        j = i + 1
        if "scc" in x.wr:
            while j < len(seq) and "scc" in seq[j].rd:
                j += 1
        out.append(seq[i:j] if j - i > 1 else x)
        i = j
    return out
```

```python
import re

TRANS = ("v_exp_f32", "v_log_f32", "v_rcp_f32", "v_rsq_f32", "v_sqrt_f32", "v_sin_f32", "v_cos_f32")


def _regs(tok):
    tok = tok.strip()
    neg = tok.lstrip("-")
    if neg.startswith("abs(") or neg.startswith("|"):
        neg = neg.replace("abs(", "").replace(")", "").replace("|", "")
    tok = neg
    m = re.fullmatch(r"([vas])\[(\d+):(\d+)\]", tok)
    if m:
        return [f"{m.group(1)}{i}" for i in range(int(m.group(2)), int(m.group(3)) + 1)]
    m = re.fullmatch(r"([vas])(\d+)", tok)
    if m:
        return [tok]
    if tok == "vcc":
        return ["vcc"]
    if tok in ("vcc_lo", "vcc_hi"):
        return ["vcc"]
    if tok == "exec":
        return ["exec"]
    if tok == "m0":
        return ["m0"]
    return []


class Ins:
    __slots__ = ("text", "op", "kind", "rd", "wr", "dpp", "tag", "srcc", "passes", "nop", "cost", "wide")

    def __init__(self, text, tag=None):
        self.text = text.strip()
        self.tag = tag
        self.dpp = False
        self.srcc = []
        self.passes = 0
        self.nop = 1
        self.wide = False
        t = self.text.split(";")[0].strip()
        if t.endswith(":") or t.startswith(".") or t == "":
            self.op = ""
            self.kind = "label"
            self.rd = []
            self.wr = []
            self.nop = 0
            return
        parts = t.split(None, 1)
        op = parts[0]
        self.op = op
        rest = parts[1] if len(parts) > 1 else ""
        ops = [o.strip() for o in rest.split(",")] if rest else []
        mods = ""
        if ops:
            last = ops[-1].split(None, 1)
            ops[-1] = last[0] if last else ""
            mods = last[1] if len(last) > 1 else ""
        R = [_regs(o) for o in ops]
        flat = lambda l: [x for y in l for x in y]
        rd, wr = [], []
        if op.startswith("v_smfmac"):
            self.kind = "mfma"
            wr = R[0]
            rd = R[1] + R[2] + R[3] + R[0]
            self.srcc = R[0]
            self.passes = 4
        elif op.startswith("v_mfma"):
            self.kind = "mfma"
            wr = R[0]
            rd = R[1] + R[2] + R[3]
            self.srcc = R[3]
            self.passes = 4 if "16x16x32" in op else 8
        elif op.startswith("ds_read") or op.startswith("ds_bpermute") or op.startswith("ds_swizzle"):
            self.kind = "dsr"
            wr = R[0]
            rd = flat(R[1:])
        elif op.startswith("ds_write") or op.startswith("ds_or") or op.startswith("ds_add"):
            self.kind = "dsw"
            rd = flat(R)
        elif op.startswith("buffer_load") and re.search(r"\blds\b", mods):
            self.kind = "dma"
            rd = flat(R) + ["m0"]
        elif op.startswith("global_load_lds"):
            self.kind = "dma"
            rd = flat(R) + ["m0"]
        elif op.startswith("buffer_load") or op.startswith("global_load"):
            self.kind = "vld"
            wr = R[0]
            rd = flat(R[1:])
        elif op.startswith("buffer_store") or op.startswith("global_store"):
            self.kind = "vst"
            rd = flat(R)
            self.wide = "x4" in op or "x3" in op
        elif op.startswith("buffer_atomic") or op.startswith("global_atomic"):
            if re.search(r"\bsc0\b", mods):
                self.kind = "vld"
                wr = R[0]
                rd = flat(R)
            else:
                self.kind = "vst"
                rd = flat(R)
        elif op.startswith("buffer_inv") or op.startswith("buffer_wbl2"):
            self.kind = "vst"
        elif op.startswith("s_load") or op.startswith("s_memtime") or op.startswith("s_memrealtime"):
            self.kind = "smem"
            wr = R[0]
            rd = flat(R[1:])
        elif op == "s_waitcnt":
            self.kind = "wait"
        elif op == "s_barrier":
            self.kind = "barrier"
        elif op == "s_nop":
            self.kind = "nop"
            self.nop = int(ops[0], 0) + 1
        elif op.startswith("s_cbranch") or op == "s_branch" or op == "s_endpgm" or op == "s_setprio" or op == "s_sleep":
            self.kind = "branch"
            if "scc" in op:
                rd = ["scc"]
            if "vcc" in op:
                rd = ["vcc"]
            if "exec" in op:
                rd = ["exec"]
        elif op.startswith("s_cmp") or op.startswith("s_bitcmp"):
            self.kind = "salu"
            rd = flat(R)
            wr = ["scc"]
        elif op.startswith("s_setpc"):
            self.kind = "branch"
            rd = flat(R)
        elif op.startswith("s_"):
            self.kind = "salu"
            wr = list(R[0])
            rd = flat(R[1:])
            if op.startswith("s_cselect") or op.startswith("s_addc") or op.startswith("s_subb"):
                rd.append("scc")
            if "saveexec" in op:
                wr.append("exec")
                rd.append("exec")
            if op.startswith("s_addk") or op.startswith("s_mulk"):
                rd += R[0]
            if not (op.startswith("s_mov") or op.startswith("s_cselect") or op.startswith("s_mul") or op.startswith("s_getpc") or op.startswith("s_getreg")):
                wr.append("scc")
        elif op.startswith("v_"):
            base = op.replace("_e32", "").replace("_e64", "").replace("_dpp", "")
            self.kind = "trans" if base in TRANS else "valu"
            if "permlane" in op and "swap" in op:
                wr = R[0] + R[1]
                rd = R[0] + R[1]
            elif base in ("v_add_co_u32", "v_sub_co_u32", "v_addc_co_u32"):
                wr = R[0] + R[1]
                rd = flat(R[2:])
            else:
                wr = R[0]
                rd = flat(R[1:])
                if base.startswith("v_fmac") or base.startswith("v_dot2c"):
                    rd = rd + R[0]
                if base.startswith("v_cndmask") and len(ops) == 3:
                    rd.append("vcc")
            if re.search(r"row_|quad_perm|wave_", mods):
                self.dpp = True
                rd = rd + R[0]
        else:
            raise ValueError("unknown instruction: " + text)
        self.rd = rd
        self.wr = wr

    def __repr__(self):
        return self.text


def I(text, tag=None):
    return Ins(text, tag)


class CheckError(Exception):
    pass


def check_trace(trace, name="", verbose=False, init_pending=None):
    errs = []
    n = len(trace)
    pos = [0] * (n + 1)
    for i, ins in enumerate(trace):
        pos[i + 1] = pos[i] + ins.nop

    def dist(j, i):
        return pos[i] - pos[j + 1]

    last_valu_w = {}
    last_trans_w = {}
    last_mfma_w = {}
    last_mfma_c = {}
    last_salu_w = {}
    last_store_r = {}
    lg = []
    vm = []

    def err(i, msg):
        errs.append(f"[{name}] @{i} `{trace[i].text}`: {msg}")

    for i, ins in enumerate(trace):
        k = ins.kind
        if k == "label":
            if ins.text.startswith("; REQUIRE_LANDED"):
                tg = ins.text.split()[2]
                for (j, regs, t) in vm:
                    if t == tg:
                        err(i, f"vm op {j} `{trace[j].text}` tag {tg} still outstanding")
            if ins.text.startswith("; REQUIRE_LGKM0"):
                if lg:
                    err(i, "lgkm ops outstanding")
            continue
        if k == "wait":
            m = re.search(r"vmcnt\((\d+)\)", ins.text)
            if m:
                c = int(m.group(1))
                if c > 63:
                    err(i, "vmcnt > 63")
                while len(vm) > c:
                    vm.pop(0)
            m = re.search(r"lgkmcnt\((\d+)\)", ins.text)
            if m:
                c = int(m.group(1))
                if c > 15:
                    err(i, "lgkmcnt > 15")
                if c == 0:
                    lg.clear()
                else:
                    if any(s for (_, _, s) in lg):
                        pass
                    else:
                        while len(lg) > c:
                            lg.pop(0)
            continue
        touched = set(ins.rd) | set(ins.wr)
        for (j, regs, s) in lg:
            if touched & set(regs):
                err(i, f"touches pending lgkm dest of {j} `{trace[j].text}`")
        for (j, regs, t) in vm:
            if touched & set(regs) and not (k == "vld" and set(regs) <= set(ins.wr) and not set(ins.rd) & set(regs)):
                err(i, f"touches pending vm dest of {j} `{trace[j].text}`")
        isv = k in ("valu", "trans")
        for r in ins.rd:
            if k == "mfma":
                if r in last_valu_w and dist(last_valu_w[r], i) < 2:
                    err(i, f"VALU write {r} -> MFMA read <2")
                if r in last_mfma_w:
                    j = last_mfma_w[r]
                    p = trace[j]
                    d = dist(j, i)
                    ab = [x for x in ins.rd[: len(ins.rd) - len(ins.srcc)]]
                    if r in ab:
                        need = 8 if p.passes == 4 else 12
                        if d < need:
                            err(i, f"MFMA D {r} -> MFMA A/B read {d}<{need}")
                    elif r in ins.srcc:
                        if ins.srcc == p.wr and ins.passes == p.passes:
                            pass
                        else:
                            need = 6 if p.passes == 4 else 10
                            if d < need:
                                err(i, f"MFMA D {r} -> MFMA SrcC overlap {d}<{need}")
            else:
                if r in last_mfma_w:
                    j = last_mfma_w[r]
                    need = 8 if trace[j].passes == 4 else 12
                    if dist(j, i) < need:
                        err(i, f"MFMA D {r} -> read {dist(j,i)}<{need}")
            if r in last_trans_w and k != "trans" and dist(last_trans_w[r], i) < 1:
                err(i, f"trans result {r} used <1")
            if r in last_valu_w:
                d = dist(last_valu_w[r], i)
                if r[0] in "va" and r != "vcc":
                    if ins.dpp and d < 2:
                        err(i, f"VALU write {r} -> DPP read <2")
                    if "permlane" in ins.op and d < 2:
                        err(i, f"VALU write {r} -> permlane <2")
                    if ("readfirstlane" in ins.op or "readlane" in ins.op) and d < 1:
                        err(i, f"VALU write {r} -> readlane <1")
                else:
                    if isv and d < 2:
                        err(i, f"VALU write {r} -> VALU const read <2")
                    if k in ("vld", "vst", "dma") and d < 5:
                        err(i, f"VALU write {r} -> VMEM read <5")
                    if k in ("salu", "branch") and d < 1:
                        pass
            if r == "m0" and k == "dma" and "m0" in last_salu_w and dist(last_salu_w["m0"], i) < 1:
                err(i, "SALU m0 write -> DMA <1")
        for r in ins.wr:
            if k != "mfma" and r in last_mfma_w:
                j = last_mfma_w[r]
                need = 8 if trace[j].passes == 4 else 12
                if dist(j, i) < need:
                    err(i, f"MFMA D {r} -> overwrite {dist(j,i)}<{need}")
            if k == "mfma" and r in last_mfma_w:
                j = last_mfma_w[r]
                if not (ins.srcc == trace[j].wr):
                    need = 6 if trace[j].passes == 4 else 10
                    if dist(j, i) < need:
                        err(i, f"MFMA D {r} WAW unchained {dist(j,i)}<{need} (conservative)")
            if isv and r in last_mfma_c:
                j = last_mfma_c[r]
                need = 3 if trace[j].passes == 4 else 7
                if dist(j, i) < need:
                    err(i, f"MFMA SrcC {r} -> VALU overwrite <{need}")
            if r in last_store_r:
                d = dist(last_store_r[r], i)
                need = 2 if isv else 1
                if d < need:
                    err(i, f"wide store data {r} overwritten <{need}")
        for r in ins.wr:
            last_valu_w.pop(r, None)
            last_trans_w.pop(r, None)
            last_mfma_w.pop(r, None)
            last_salu_w.pop(r, None)
            if isv:
                last_valu_w[r] = i
                if k == "trans":
                    last_trans_w[r] = i
            elif k == "mfma":
                last_mfma_w[r] = i
            elif k == "salu":
                last_salu_w[r] = i
        if k == "mfma":
            for r in ins.srcc:
                last_mfma_c[r] = i
        if k == "vst" and ins.wide:
            for r in ins.rd[:4]:
                last_store_r[r] = i
        if k in ("dsr", "dsw"):
            lg.append((i, ins.wr, False))
            if len(lg) > 15 + 48:
                pass
        elif k == "smem":
            lg.append((i, ins.wr, True))
        elif k in ("vld", "vst", "dma"):
            vm.append((i, ins.wr, ins.tag))
            if len(vm) > 63:
                err(i, "more than 63 vm ops outstanding (counter saturates -> stalls)")
    return errs


class Bundle:
    def __init__(self, l):
        self.l = l
        self.kind = "bundle"


class Filler:
    __slots__ = ("ins", "lo", "hi", "prio", "sep")

    def __init__(self, ins, lo=0, hi=10**9, prio=0, sep=0):
        self.sep = sep
        if isinstance(ins, (list, tuple)):
            self.ins = Bundle([x if isinstance(x, Ins) else Ins(x) for x in ins])
        else:
            self.ins = ins if isinstance(ins, Ins) else Ins(ins)
        self.lo = lo
        self.hi = hi
        self.prio = prio


def cost(ins):
    k = ins.kind
    if k == "bundle":
        return 4 * (len(ins.l) - 1)
    if k == "trans":
        return 8
    if k == "valu":
        return 4
    if k in ("dsr", "dsw"):
        return 4
    if k in ("dma", "vld", "vst"):
        return 8
    return 0


def weave(mfmas, streams, budget=8, report=None, sc=0):
    out = []
    for st in streams:
        for i in range(len(st) - 2, -1, -1):
            st[i].hi = min(st[i].hi, st[i + 1].hi)
            st[i].lo = min(st[i].lo, st[i].hi)
    ptr = [0] * len(streams)
    lastg = [-100] * len(streams)
    ng = len(mfmas)
    over = 0
    for g in range(ng):
        out.append(mfmas[g])
        left = budget
        head = []
        tail = []
        in_tail = set()
        used_first = False
        while True:
            cands = []
            for s, st in enumerate(streams):
                if ptr[s] < len(st) and st[ptr[s]].lo <= g and lastg[s] + st[ptr[s]].sep <= g:
                    f = st[ptr[s]]
                    cands.append((f.hi, -f.prio, s, f))
            if not cands:
                break
            cands.sort(key=lambda x: (x[0], x[1], x[2]))
            placed = False
            for (_, _, s, f) in cands:
                k = f.ins.kind
                c = cost(f.ins) + (sc if k == "salu" else 0)
                forced = f.hi <= g
                if k == "label":
                    (tail if s in in_tail else head).append(f.ins)
                    placed = True
                elif k in ("valu", "trans"):
                    if c <= left or forced:
                        tail.append(f.ins)
                        in_tail.add(s)
                        left -= c
                        placed = True
                else:
                    if (not used_first or (sc and c)) and s not in in_tail and (c <= left or (k == 'bundle' and left == budget)):
                        head.append(f.ins)
                        used_first = True
                        left -= c
                        placed = True
                    elif forced:
                        if s in in_tail:
                            tail.append(f.ins)
                            left -= c + (8 if c else 4)
                        else:
                            head.append(f.ins)
                            left -= c + (0 if c else 4)
                        used_first = True
                        placed = True
                if placed:
                    ptr[s] += 1
                    lastg[s] = g
                    break
            if not placed:
                break
        if left < 0:
            over += -left
        for x in head + tail:
            out += x.l if x.kind == "bundle" else [x]
    nleft = 0
    while True:
        cands = [(streams[s][ptr[s]].lo, s) for s in range(len(streams)) if ptr[s] < len(streams[s])]
        if not cands:
            break
        cands.sort()
        s = cands[0][1]
        f = streams[s][ptr[s]]
        if f.sep >= 2:
            out.append(Ins("s_nop 1"))
        out += f.ins.l if f.ins.kind == "bundle" else [f.ins]
        ptr[s] += 1
        nleft += 1
    if report:
        print(f"weave {report}: {ng} mfma, over-budget {over} cyc, left-over {nleft}")
    return out, over


class Prog:
    def __init__(self):
        self.blocks = {}
        self.order = []

    def block(self, name, ins):
        l = []
        if isinstance(ins, str):
            ins = [ins]
        for x in ins:
            if isinstance(x, str):
                for ln in x.strip("\n").split("\n"):
                    if ln.strip():
                        l.append(Ins(ln))
            else:
                l.append(x)
        self.blocks[name] = l
        self.order.append(name)
        return l

    def text(self):
        o = []
        for n in self.order:
            for ins in self.blocks[n]:
                t = ins.text
                o.append(t if (t.endswith(":") or t.startswith(".")) else "    " + t)
        return "\n".join(o) + "\n"

    def check(self, names, label=""):
        tr = []
        for n in names:
            tr += self.blocks[n]
        errs = check_trace(tr, label or ",".join(names))
        return errs


def L(text):
    return [Ins(ln) for ln in text.strip("\n").split("\n") if ln.strip()]


def dataflow(seq):
    last = {}
    reads = {}
    for ins in seq:
        if ins.kind in ("label", "wait", "nop", "barrier"):
            continue
        reads[id(ins)] = tuple(last.get(r) for r in ins.rd)
        for r in ins.wr:
            last[r] = id(ins)
    return reads, last


def check_equiv(ref, woven, name=""):
    ra, la = dataflow(ref)
    rb, lb = dataflow(woven)
    errs = []
    if set(ra) != set(rb):
        errs.append(f"[{name}] instruction sets differ: {len(ra)} vs {len(rb)}")
        return errs
    byid = {id(i): i for i in ref}
    for k in ra:
        if ra[k] != rb[k]:
            errs.append(f"[{name}] dataflow differs at `{byid[k].text}`")
    for r in la:
        if r != "scc" and la[r] != lb.get(r):
            errs.append(f"[{name}] final writer of {r} differs")
    return errs


def resolve_waits(seq):
    tags = []; ltags = []
    for ins in seq:
        if ins.kind in ("vld", "vst", "dma"):
            if ins.tag != "clr": tags.append(ins.tag)
        elif ins.kind in ("dsr", "dsw"):
            ltags.append(ins.tag)
        elif ins.kind == "wait" and "@" in ins.text:
            for (nm, tg, cap) in (("vmcnt", tags, 63), ("lgkmcnt", ltags, 15)):
                m = re.search(nm + r"\(([^)]*)\)", ins.text)
                if not m or "@" not in m.group(1): continue
                want = [t.strip()[1:] for t in m.group(1).split("|")]
                idx = [i for i, t in enumerate(tg) if t in want]
                n = len(tg) - 1 - max(idx) if idx else cap
                ins.text = ins.text.replace(m.group(0), f"{nm}({min(n, cap)})")
    return seq


def bundles(seq):
    out = []
    i = 0
    seq = [x if isinstance(x, Ins) else Ins(x) for x in seq]
    while i < len(seq):
        x = seq[i]
        j = i + 1
        if "scc" in x.wr:
            while j < len(seq) and "scc" in seq[j].rd:
                j += 1
        out.append(seq[i:j] if j - i > 1 else x)
        i = j
    return out
```

```python
from asmlib import *

XN_OFF   = 0x0000000
H_OFF    = 0x0200000
ST_OFF   = 0x0400000
CS_OFF   = 0x0420000
WGU_OFF  = 0x0500000
ACT_OFF  = 0x0900000
CTX_OFF  = 0x1000000
KV_OFF   = 0x2000000
XN_SZ, H_SZ, ST_SZ, CS_SZ = 0x200000, 0x200000, 0x20000, 8*7168
WGU_SZ, ACT_SZ, CTX_SZ, KV_SZ = 112*32768, 32*56*4096, 0x1000000, 0x2000000

FL_OFF, FL_SZ = 0x0480000, 0x16000
FL_XN, FL_KV, FL_H, FL_ACT, FL_CTX, FL_HD, FL_KL = 0, 0x2000, 0x4000, 0x6000, 0xa000, 0x12000, 0x14000
WO_OFF, WO_SZ = 0x4000000, 8*128*4096
WD_OFF, WD_SZ = 0x4400000, 8*56*4096
import os
ALIAS = int(os.environ.get("ALIAS", "1"))
ACT_TILE, ACT_WAVE, ACT_BASE = (128*4096, 32*4096, 18*4096) if ALIAS else (56*4096, 14*4096, 0)
HB_OFF, HB_STR = (KV_OFF, 0x100000) if ALIAS else (H_OFF, 0x11000)
XB_OFF, XB_SZ = (KV_OFF, KV_SZ) if ALIAS else (0x4900000, 0x400000)
WSB = int(os.environ.get('WSB', '0xB000000'), 0)
A_X, A_CKV, A_WQ, A_WUK, A_WUV, A_WO, A_BX, A_WG, A_WU, A_WD, A_OUT, A_DBG, A_WS = [8*i for i in range(13)]

QSCALE = 1.4426950408889634 / (128 ** 0.5)

import struct
def f32(x):
    return "0x%08x" % struct.unpack("<I", struct.pack("<f", x))[0]

def srd_from(dst, ptr, size, off=0):
    o = []
    if off:
        o.append(f"s_add_u32 s{dst}, s{ptr}, {hex(off)}")
        o.append(f"s_addc_u32 s{dst+1}, s{ptr+1}, 0")
    else:
        o.append(f"s_mov_b32 s{dst}, s{ptr}")
        o.append(f"s_mov_b32 s{dst+1}, s{ptr+1}")
    o.append(f"s_mov_b32 s{dst+2}, {hex(size)}")
    o.append(f"s_mov_b32 s{dst+3}, 0x00020000")
    return "\n".join(o) + "\n"

def vr(b, n=4): return f"v[{b}:{b+n-1}]"
def ar(b, n=4): return f"a[{b}:{b+n-1}]"

def mfma(d, a, b, c):
    return Ins(f"v_mfma_f32_16x16x32_bf16 {d}, {a}, {b}, {c}")

def kdesc(name, vgpr=512, accum=256, sgpr=102):
    return f""".amdhsa_kernel {name}
  .amdhsa_next_free_vgpr {vgpr}
  .amdhsa_next_free_sgpr {sgpr}
  .amdhsa_accum_offset {accum}
  .amdhsa_group_segment_fixed_size 0
  .amdhsa_kernarg_size 104
  .amdhsa_user_sgpr_count 2
  .amdhsa_user_sgpr_kernarg_segment_ptr 1
  .amdhsa_system_sgpr_workgroup_id_x 1
.end_amdhsa_kernel
"""

def khead(name):
    return f""".globl {name}
.p2align 8
.type {name},@function
{name}:
"""

def xsum4(x, t):
    return [f"v_mov_b32 v{t}, v{x}", "s_nop 1", f"v_permlane32_swap_b32 v{x}, v{t}", f"v_add_f32 v{x}, v{x}, v{t}",
            f"v_mov_b32 v{t}, v{x}", "s_nop 1", f"v_permlane16_swap_b32 v{x}, v{t}", f"v_add_f32 v{x}, v{x}, v{t}"]

def code_prefetch(name, end_label, vtmp, stmp, nlines):
    o = [f"s_getpc_b64 s[{stmp}:{stmp+1}]",
         f"v_and_b32 v{vtmp}, 63, v0", f"v_lshlrev_b32 v{vtmp}, 7, v{vtmp}"]
    return o

import os
STAMPS = os.environ.get("STAMPS", "0") == "1"
STAMP_OFF = 0x4800000
STAMP_SEL = os.environ.get("STAMP_SEL", "")
def _slot(i):
    if isinstance(i, str):
        sel = STAMP_SEL.split(",")
        return sel.index(i) + 2 if i in sel else None
    return i
def stamp(i):
    named = isinstance(i, str)
    i = _slot(i)
    if not STAMPS or i is None: return []
    if named and os.environ.get("RT") == "2":
        j = 2 + 2*(i - 2)
        return [Ins(f"s_memrealtime s[{80+2*j}:{81+2*j}]"), Ins(f"s_memtime s[{82+2*j}:{83+2*j}]")]
    op = "s_memrealtime" if (os.environ.get("RT", "1") == "1" and i > 1) else "s_memtime"
    return [Ins(f"{op} s[{80+2*i if i < 9 else 100}:{81+2*i if i < 9 else 101}]")]
def stamp_rt(i):
    if not STAMPS: return []
    return [Ins(f"s_memrealtime s[{80+2*i if i < 9 else 100}:{81+2*i if i < 9 else 101}]")]
def stamp_dump(kidx, n, sw, wsptr, vt=4):
    if not STAMPS: return []
    if os.environ.get("DBGWG"):
        base = 80 if os.environ.get("RT", "1") == "1" else 82
        o = [f"s_load_dwordx2 s[4:5], s[0:1], {A_DBG}", "s_waitcnt lgkmcnt(0)", "s_mov_b32 s6, 256", "s_mov_b32 s7, 0x00020000",
             f"s_cmp_eq_u32 s2, {os.environ['DBGWG']}", "s_cselect_b32 s8, 0, 0x1000", f"s_lshl_b32 s9, s{sw}, 12", "s_add_u32 s8, s8, s9", f"v_mov_b32 v{vt}, s8"]
        for i in range(2, 10):
            o += [f"s_sub_u32 s9, s{80+2*i if i < 9 else 100}, s{base if i < 9 else 80}", f"v_mov_b32 v{vt+1}, s9", f"buffer_store_dword v{vt+1}, v{vt}, s[4:7], 0 offen offset:{4*i}", "s_nop 1"]
        return [Ins(x) for x in o + ["s_waitcnt vmcnt(0)"]]
    o = ["s_waitcnt lgkmcnt(0)",
         f"s_add_u32 s4, s{wsptr}, {hex(STAMP_OFF + kidx*0x10000)}", f"s_addc_u32 s5, s{wsptr+1}, 0", "s_mov_b32 s6, 0x10000", "s_mov_b32 s7, 0x00020000",
         f"s_lshl_b32 s8, s2, 2", f"s_add_u32 s8, s8, s{sw}", "s_lshl_b32 s8, s8, 6", f"v_mov_b32 v{vt}, s8"]
    for i in range(n):
        o += [f"v_mov_b32 v{vt+1}, s{80+2*i if i < 9 else 100}", f"buffer_store_dword v{vt+1}, v{vt}, s[4:7], 0 offen offset:{4*i}", "s_nop 1"]
    o.append("s_waitcnt vmcnt(0)")
    return [Ins(x) for x in o]
```
